```python
import torch

def _softmax(x, axis=-1):
    return torch.softmax(x, dim=axis)

def _gelu(x):
    return torch.nn.functional.gelu(x, approximate='tanh')

def _silu(x):
    return torch.nn.functional.silu(x)

def _sigmoid(x):
    return torch.sigmoid(x)

def _layernorm(x, axis=-1, eps=1e-05):
    m = x.mean(dim=axis, keepdim=True)
    v = x.var(dim=axis, keepdim=True, unbiased=False)
    return (x - m) / torch.sqrt(v + eps)

def _scatter_add(tgt, idx, src, axis=0):
    return tgt.clone().index_add_(axis, idx, src)

def _segment_sum(src, seg, n):
    out = torch.zeros((n,) + src.shape[1:], dtype=src.dtype)
    return out.index_add_(0, seg, src)

def _pad(x, pw):
    flat = tuple((v for pair in reversed(pw) for v in pair))
    return torch.nn.functional.pad(x, flat)
kernel_name = 'adaLN_cond__softmax_full_mha__dense_activation_relu__prompt'

def setup_inputs():

    _w = lambda a: (lambda t: t.to(torch.bfloat16) if t.is_floating_point() else t)(torch.as_tensor(a))

    def _A_setup():
        B, S, D = (1, 2048, 512)
        return {'x': _w((lambda *s: torch.randn(*s, dtype=torch.bfloat16) * 0.05)(B, S, D)), 'wqkv': _w((lambda *s: torch.randn(*s, dtype=torch.bfloat16) * 0.05)(D, 3 * D)), 'wo': _w((lambda *s: torch.randn(*s, dtype=torch.bfloat16) * 0.05)(D, D))}
    _A_in = _A_setup()

    def _B_setup():
        B, S, D, Dff = (1, 2048, 512, 1376)
        return {'x': _w((lambda *s: torch.randn(*s, dtype=torch.bfloat16) * 0.05)(B, S, D)), 'w1': _w((lambda *s: torch.randn(*s, dtype=torch.bfloat16) * 0.05)(D, Dff)), 'w2': _w((lambda *s: torch.randn(*s, dtype=torch.bfloat16) * 0.05)(Dff, D))}
    _B_in = _B_setup()
    return {'A_x': _A_in['x'], 'A_wqkv': _A_in['wqkv'], 'A_wo': _A_in['wo'], 'B_x': _B_in['x'], 'B_w1': _B_in['w1'], 'B_w2': _B_in['w2'], 'c': _w((lambda *s: torch.randn(*s, dtype=torch.bfloat16) * 0.1)(1, 512) * 8.0), 'w_mod': _w((lambda *s: torch.randn(*s, dtype=torch.bfloat16) * 0.1)(512, 6 * 512) * 512 ** (-0.5) * 8.0)}

def reference(A_x, A_wqkv, A_wo, B_x, B_w1, B_w2, c, w_mod):

    def _A_ref(x, wqkv, wo):
        B, S, D = x.shape
        H = 32
        Dh = D // H
        qkv = (lambda x, *d: x.permute(*d))((x @ wqkv).reshape(B, S, 3, H, Dh), 2, 0, 3, 1, 4)
        q, k, v = (qkv[0], qkv[1], qkv[2])
        scale = Dh ** (-0.5)
        scores = torch.einsum('bhqd,bhkd->bhqk', q, k) * scale
        p = _softmax(scores, axis=-1)
        o = torch.einsum('bhqk,bhkd->bhqd', p, v)
        return (lambda x, *d: x.permute(*d))(o, 0, 2, 1, 3).reshape(B, S, D) @ wo

    def _B_ref(x, w1, w2):
        h = torch.einsum('bsd,df->bsf', x, w1)
        zero = torch.zeros_like(h)
        h = torch.maximum(h, zero)
        return torch.einsum('bsf,fd->bsd', h, w2)
    x = A_x
    mod = (_silu(c) @ w_mod).reshape(c.shape[0], 6, 1, -1)
    sa, ca, ga, sb, cb, gb = (mod[:, 0].clone(), mod[:, 1].clone(), mod[:, 2].clone(), mod[:, 3].clone(), mod[:, 4].clone(), mod[:, 5].clone())
    h = _layernorm(x, axis=-1) * (1 + ca) + sa
    x = x + ga * _A_ref(h, A_wqkv, A_wo)
    h = _layernorm(x, axis=-1) * (1 + cb) + sb
    x = x + gb * _B_ref(h, B_w1, B_w2)
    return x
```

```python
import re

def vr(a, n=1):
    return f"v{a}" if n == 1 else f"v[{a}:{a+n-1}]"
def sr(a, n=1):
    return f"s{a}" if n == 1 else f"s[{a}:{a+n-1}]"

_REG = re.compile(r"^-?\|?(?:abs\()?([vsa])(?:(\d+)|\[(\d+):(\d+)\])")
def regs_of(op):
    op = op.strip()
    if op in ("vcc", "vcc_lo", "vcc_hi"): return {("s", "vcc")}
    if op in ("exec", "exec_lo", "exec_hi"): return {("s", "exec")}
    if op == "m0": return {("s", "m0")}
    m = _REG.match(op)
    if not m: return set()
    k = m.group(1)
    if m.group(2) is not None: return {(k, int(m.group(2)))}
    return {(k, i) for i in range(int(m.group(3)), int(m.group(4)) + 1)}

TRANS = ("v_exp_", "v_log_", "v_rcp_", "v_rsq_", "v_sqrt_", "v_sin_", "v_cos_")
class Ins:
    def __init__(self, text):
        self.text = text
        t = text.split(";")[0].strip()
        self.label = t.endswith(":")
        self.directive = t.startswith(".")
        self.empty = (t == "")
        self.mn = ""
        self.defs = set(); self.uses = set()
        self.kind = None
        if self.label or self.directive or self.empty: return
        parts = t.split(None, 1)
        mn = self.mn = parts[0]
        rest = parts[1] if len(parts) > 1 else ""
        ops = []; depth = 0; cur = ""
        for ch in rest:
            if ch in "[(": depth += 1
            if ch in "])": depth -= 1
            if ch == "," and depth == 0: ops.append(cur.strip()); cur = ""
            else: cur += ch
        if cur.strip(): ops.append(cur.strip())
        mods = ""
        if ops:
            last = ops[-1].split(None, 1)
            ops[-1] = last[0]
            mods = last[1] if len(last) > 1 else ""
        self.ops = ops; self.mods = mods
        R = [regs_of(o) for o in ops]
        self.states = 1
        if mn == "s_nop":
            self.kind = "nop"; self.states = int(ops[0], 0) + 1
        elif mn.startswith("v_mfma") or mn.startswith("v_smfmac"):
            self.kind = "mfma"
            self.passes = 8 if "32x32" in mn else 4
            self.defs = R[0]
            if mn.startswith("v_mfma"):
                self.ab = R[1] | R[2]; self.c = R[3]
            else:
                self.ab = R[1] | R[2] | R[3]; self.c = R[0]
            self.uses = self.ab | self.c
        elif mn.startswith("v_"):
            self.kind = "valu"
            self.trans = mn.startswith(TRANS)
            self.dpp = ("_dpp" in mn) or ("row_" in mods) or ("quad_perm" in mods)
            self.perml = mn.startswith("v_permlane")
            self.rdlane = mn.startswith("v_readlane") or mn.startswith("v_readfirstlane")
            if self.perml:
                self.defs = R[0] | R[1]; self.uses = R[0] | R[1]
            elif re.match(r"v_(add|sub|subrev|addc|subb|subbrev)_co_", mn) or mn.startswith("v_div_scale") or mn.startswith("v_mad_u64"):
                self.defs = R[0] | R[1]; self.uses = set().union(*R[2:])
            else:
                self.defs = R[0]; self.uses = set().union(*R[1:]) if len(R) > 1 else set()
                if mn.startswith(("v_fmac", "v_dot2c", "v_writelane")) or self.dpp: self.uses |= R[0]
        elif mn.startswith(("buffer_", "global_")):
            self.kind = "vmem"
            self.lds = (" lds" in " " + mods) or "_lds_" in mn
            self.wide_store = False
            if "load" in mn and not self.lds:
                self.defs = R[0]; self.uses = set().union(*R[1:])
            else:
                self.uses = set().union(*R)
                if "store" in mn and ("x4" in mn or "x3" in mn):
                    self.wide_store = True
                    self.data = R[0] if mn.startswith("buffer_") else R[1]
                if "atomic" in mn and "sc0" in mods: self.defs = R[0]
        elif mn.startswith("ds_"):
            self.kind = "ds"
            if "read" in mn or "permute" in mn or "swizzle" in mn or "rtn" in mn:
                self.defs = R[0]; self.uses = set().union(*R[1:])
            else:
                self.uses = set().union(*R)
        elif mn.startswith("s_"):
            self.kind = "salu"
            if mn.startswith(("s_cmp", "s_cbranch", "s_branch", "s_waitcnt", "s_barrier", "s_endpgm", "s_setprio", "s_sleep", "s_setpc", "s_bitcmp")):
                self.uses = set().union(*R) if R else set()
            else:
                self.defs = R[0] if R else set(); self.uses = set().union(*R[1:]) if len(R) > 1 else set()
                if "saveexec" in mn: self.defs = self.defs | {("s", "exec")}
        else:
            raise ValueError("unknown instruction: " + text)

def need(p, c):
    n = 0
    vdefs = {r for r in p.defs if r[0] in "va"}
    sdefs = {r for r in p.defs if r[0] == "s"}
    if p.kind == "valu":
        if c.kind == "mfma" and vdefs & c.uses: n = max(n, 2)
        if c.kind == "valu":
            if (c.perml or c.dpp) and vdefs & c.uses: n = max(n, 2)
            if c.rdlane and vdefs & c.uses: n = max(n, 1)
            if p.trans and not c.trans and vdefs & c.uses: n = max(n, 1)
            if sdefs & c.uses: n = max(n, 4 if (c.rdlane or c.mn.startswith("v_writelane")) else 2)
            if ("sdwa" in p.mn) and vdefs & (c.uses | c.defs): n = max(n, 1)
        if c.kind in ("vmem", "ds") and p.trans and vdefs & c.uses: n = max(n, 1)
        if c.kind == "vmem" and sdefs & c.uses: n = max(n, 5)
        if c.kind == "salu" and sdefs & c.uses: n = max(n, 1)
    if p.kind == "mfma":
        big = 12 if p.passes == 8 else 8
        if c.kind == "valu":
            if p.defs & (c.uses | c.defs): n = max(n, big)
            if p.c & c.defs: n = max(n, 7 if p.passes == 8 else 3)
        if c.kind in ("vmem", "ds") and p.defs & (c.uses | c.defs): n = max(n, big)
        if c.kind == "mfma":
            if p.defs & c.ab: n = max(n, big)
            if p.defs & c.c:
                if not (p.defs == c.c and p.passes == c.passes): n = max(n, 10 if p.passes == 8 else 6)
            elif p.defs & c.defs and p.passes != c.passes: n = max(n, big)
    if p.kind == "salu":
        if ("s", "m0") in p.defs and c.kind == "vmem" and c.lds: n = max(n, 1)
    if p.kind == "vmem" and p.wide_store and p.data & c.defs:
        n = max(n, 2 if c.kind in ("valu", "mfma") else 1)
    return n

def fix_hazards(lines, report=None):
    out = []
    win = []
    added = 0
    for ln in lines:
        ins = Ins(ln)
        if ins.kind is None:
            out.append(ln); continue
        dist = 0; req = 0
        for p in reversed(win):
            if dist >= 12: break
            r = need(p, ins) - dist
            if r > req: req = r; why = p
            dist += p.states
        if req > 0:
            nop = Ins(f"s_nop {req-1}")
            out.append(f"    s_nop {req-1}")
            win.append(nop); added += req
            if report is not None: report.append((req, why.text.strip(), ln.strip()))
        out.append(ln); win.append(ins)
        if ins.mn in ("s_branch", "s_endpgm", "s_setpc_b64"): win = []
        if len(win) > 16: win = win[-16:]
    return out, added

class Asm:
    def __init__(self):
        self.L = []
        self.vm = []
        self.lg = []
        self.uid = 0
    def __call__(self, s):
        for ln in s.split("\n"):
            ln = ln.strip()
            if ln: self.L.append(ln if ln.endswith(":") else "    " + ln)
    def label(self, name): self.L.append(name + ":")
    def newlabel(self, base):
        self.uid += 1
        return f"L_{base}_{self.uid}"
    def c(self, s): self.L.append("    ; " + s)
    def vmem(self, s, tag=None, cond=False):
        self(s); self.vm.append((tag, cond))
    def ds(self, s, tag=None):
        self(s); self.lg.append(tag)
    def _n(self, lst, tags, cond=False):
        if not isinstance(tags, (list, tuple, set)): tags = [tags]
        idx = -1
        for i, e in enumerate(lst):
            t = e[0] if cond else e
            if t in tags: idx = i
        return idx
    def wait_vm(self, tags=None):
        if tags is None:
            self("s_waitcnt vmcnt(0)"); self.vm = []; return
        idx = self._n(self.vm, tags, True)
        if idx < 0: return
        n = sum(1 for e in self.vm[idx+1:] if not e[1])
        n = min(n, 63)
        self(f"s_waitcnt vmcnt({n})")
        self.vm = self.vm[idx+1:]
    def wait_lg(self, tags=None):
        if tags is None:
            self("s_waitcnt lgkmcnt(0)"); self.lg = []; return
        idx = self._n(self.lg, tags)
        if idx < 0: return
        n = min(len(self.lg) - idx - 1, 15)
        self(f"s_waitcnt lgkmcnt({n})")
        self.lg = self.lg[idx+1:]
    def save(self): return (list(self.vm), list(self.lg))
    def restore(self, st): self.vm, self.lg = list(st[0]), list(st[1])
```

```python
from dsl import *
from mega import *

vL, vL16 = 0, 2
B1 = 128

def p2(g, role):
    a = g.a
    vV, vIdx, vF = 3, 4, 5
    Q0, Q1, O0, O1, S0, S1, RING = 8, 12, 16, 32, 48, 64, 80
    NST = 4
    FL = 124
    t0, t1 = 5, 6
    par = 1 if role == "H" else 0
    a(f"s_and_b32 s{sT1}, s{sW}, 3")
    a(f"s_lshl_b32 s{sT0}, s{sJ}, 2\ns_add_u32 s{sT0}, s{sT0}, s{sT1}\ns_lshl_b32 s{sKVB}, s{sT0}, 17\ns_add_u32 s{sKVB}, s{sKVB}, {KV + par*2048}")
    a(f"v_lshrrev_b32 v{t0}, 5, v{vL}\nv_and_b32 v{t1}, 15, v{vL}\nv_lshlrev_b32 v{t1}, 4, v{t1}\nv_lshl_add_u32 v{vV}, v{t0}, 8, v{t1}")
    a(f"v_mov_b32 v{vIdx}, 0xdddddddd")
    a(f"s_lshl_b32 s{sT2}, s{sT1}, 11\ns_add_u32 s{sT2}, s{sT2}, {QX}\nv_add_u32 v{t0}, s{sT2}, v{vL16}")
    a.ds(f"ds_read_b128 {vr(Q0,4)}, v{t0} offset:{par*1024}")
    a.ds(f"ds_read_b128 {vr(Q1,4)}, v{t0} offset:{(1-par)*1024}")
    for i in range(32): a(f"v_mov_b32 v{O0+i}, 0")
    for s in range(NST):
        for i in range(8): a(f"v_mov_b32 v{RING+12*s+4+i}, 0x3f803f80")
    if role == "H":
        a(f"s_mul_i32 s{sB1}, s{sJ}, 11\ns_add_u32 s{sB1}, s{sB1}, s{sT1}")
    else:
        a(f"s_mul_i32 s{sB1}, s{sJ}, 11\ns_min_u32 s{sT2}, s{sT1}, 2\ns_add_u32 s{sB1}, s{sB1}, s{sT2}\ns_add_u32 s{sB1}, s{sB1}, 8")
    a(f"s_lshl_b32 s{sB1b}, s{sB1}, 14\ns_add_u32 s{sB1b}, s{sB1b}, {W1I}")
    a(f"s_lshr_b32 s{sT2}, s{sT1}, 1\ns_lshl_b32 s{sT2}, s{sT2}, 1\ns_lshl_b32 s{sT3}, s{sJ}, 2\ns_add_u32 s{sT2}, s{sT2}, s{sT3}\ns_add_u32 s{sT2}, s{sT2}, {par}")
    a(f"s_lshl_b32 s{sT2}, s{sT2}, 12\ns_add_u32 s{sT2}, s{sT2}, {FLAG1}")
    a(f"v_and_b32 v{t1}, 31, v{vL}\nv_lshlrev_b32 v{t1}, 7, v{t1}")
    a.wait_lg(None)
    g.poll([f"buffer_load_dword v{t0}, v{t1}, {sr(S_WS,4)}, s{sT2} offen sc1"], [t0], "kv")
    g.stamp(8)
    a(f"s_lshl_b32 s{sKVO}, s{sR}, 12")
    def kv_addr():
        return [f"s_add_u32 s{sT0}, s{sKVB}, s{sKVO}", f"s_add_u32 s{sKVO}, s{sKVO}, 4096", f"s_and_b32 s{sKVO}, s{sKVO}, 0x1ffff"]
    def ldK(n):
        r = RING + 12 * (n % NST)
        a.vmem(f"buffer_load_dwordx4 {vr(r,4)}, v{vL16}, {sr(S_WS,4)}, s{sT0} offen sc1", f"k{n}")
    def ldV(n):
        r = RING + 12 * (n % NST)
        a(f"s_mov_b64 exec, {sr(sVM,2)}")
        a.vmem(f"buffer_load_dwordx4 {vr(r+4,4)}, v{vV}, {sr(S_WS,4)}, s{sT0} offen offset:1024 sc1", f"v{n}")
        a.vmem(f"buffer_load_dwordx4 {vr(r+8,4)}, v{vV}, {sr(S_WS,4)}, s{sT0} offen offset:1536 sc1", f"v{n}")
        a("s_mov_b64 exec, -1")
    for n in range(NST - 1):
        for x in kv_addr(): a(x)
        ldK(n); ldV(n)
    a.wait_vm("k0")
    a(f"v_mfma_f32_32x32x16_bf16 {vr(S0,16)}, {vr(RING,4)}, {vr(Q0,4)}, 0")
    def ex(S, lo, hi):
        for i in range(lo, hi): a(f"v_exp_f32 v{S+i}, v{S+i}")
    def smf(O, V, P): a(f"v_smfmac_f32_32x32x32_bf16 {vr(O,16)}, {vr(V,4)}, {vr(P,8)}, v{vIdx}")
    nb1 = 32 if role == "H" else 16
    b1_next = [0]
    def ldB1(cnt):
        for _ in range(cnt):
            n = b1_next[0]
            if n >= nb1: return
            if n and n % 4 == 0:
                a(f"s_add_u32 s{sB1b}, s{sB1b}, {4096 if n != 16 else 4096 + 3*16384}")
            a.vmem(f"buffer_load_dwordx4 {vr(B1+4*n,4)}, v{vL16}, {sr(S_WS,4)}, s{sB1b} offen offset:{(n&3)*1024} sc1", "b1")
            b1_next[0] += 1
    ST_BAR, ST_LDF, ST_CHK = 6, 10, 13
    FLG = 252
    for n in range(32):
        cur = RING + 12 * (n % NST); nx = RING + 12 * ((n + 1) % NST); pv = RING + 12 * ((n - 1) % NST)
        ex(S0, 0, 2)
        if n > 0: smf(O1, pv + 8, S1 + 8)
        pre = n + NST - 1
        if pre < 32:
            for x in kv_addr(): a(x)
            ldK(pre)
        ex(S0, 2, 5)
        a(f"v_mfma_f32_32x32x16_bf16 {vr(S1,16)}, {vr(cur,4)}, {vr(Q1,4)}, 0")
        a.wait_vm(f"v{n}")
        ex(S0, 5, 10)
        smf(O0, cur + 4, S0)
        if pre < 32: ldV(pre)
        ex(S0, 10, 16)
        ex(S1, 0, 2)
        smf(O0, cur + 8, S0 + 8)
        if n + 1 < 32: a.wait_vm(f"k{n+1}")
        ex(S1, 2, 5)
        if n + 1 < 32: a(f"v_mfma_f32_32x32x16_bf16 {vr(S0,16)}, {vr(nx,4)}, {vr(Q0,4)}, 0")
        ex(S1, 5, 10)
        smf(O1, cur + 4, S1)
        if n == ST_BAR:
            a("s_barrier")
            if role == "H":
                Ls = a.newlabel("nof1b")
                a(f"s_cmp_lg_u32 s{sW}, 4\ns_cbranch_scc1 {Ls}")
                a(f"s_lshl_b32 s{sT1}, s2, 2\ns_add_u32 s{sT1}, s{sT1}, {FLAG1B}\nv_mov_b32 v{t0}, s{sTAG}\ns_mov_b64 exec, 1")
                a.vmem(f"buffer_store_dword v{t0}, off, {sr(S_WS,4)}, s{sT1} sc1", None, cond=True)
                a("s_mov_b64 exec, -1")
                a.label(Ls)
        if n == ST_LDF:
            a(f"s_mov_b32 s{sT1}, {FLAG1B}")
            a.vmem(f"buffer_load_dwordx4 {vr(FLG,4)}, v{vL16}, {sr(S_WS,4)}, s{sT1} offen sc1", "flg")
        if n == ST_CHK:
            a.wait_vm("flg")
            Lok = a.newlabel("f1bok")
            a(f"v_cmp_ne_u32 vcc, s{sTAG}, v{FLG}")
            for i in range(1, 4):
                a(f"v_cmp_ne_u32 {sr(sPM,2)}, v{FLG+i}, s{sTAG}\ns_or_b64 vcc, vcc, {sr(sPM,2)}")
            a(f"s_nop 0\ns_cbranch_vccz {Lok}")
            st = a.save()
            g.poll([f"buffer_load_dwordx4 {vr(FLG,4)}, v{vL16}, {sr(S_WS,4)}, s{sT1} offen sc1"], [FLG + i for i in range(4)], "f1b")
            a.restore(st)
            a.label(Lok)
        if n > ST_CHK: ldB1(2)
        ex(S1, 10, 16)
    cur = RING + 12 * (31 % NST)
    smf(O1, cur + 8, S1 + 8)
    assert b1_next[0] == nb1
    g.stamp(9)
    gemm_setup(g)
    a(f"s_lshl_b32 s{sT0}, s{sJ}, 1\ns_and_b32 s{sT1}, s{sW}, 1\ns_add_u32 s{sT0}, s{sT0}, s{sT1}\ns_lshl_b32 s{sT0}, s{sT0}, 15")
    a(f"s_lshr_b32 s{sT1}, s{sW}, 1\ns_lshl_b32 s{sT1}, s{sT1}, 12\ns_add_u32 s{sT0}, s{sT0}, s{sT1}\ns_add_u32 s{sT0}, s{sT0}, {WOI}\ns_add_u32 s{sT1}, s{sT0}, 16384")
    a(f"s_mul_i32 s{sT2}, s{sW}, 2304\ns_add_u32 s{sT2}, s{sT2}, {CB}\ns_xor_b32 s{sT3}, s{sW}, 4\ns_mul_i32 s{sT3}, s{sT3}, 2304\ns_add_u32 s{sT3}, s{sT3}, {CB}")
    ca, cb_, cc, cd = S0, S0 + 1, S0 + 2, S0 + 3
    a(f"v_add_u32 v{ca}, s{sT2}, v{vL16}\nv_lshlrev_b32 v{cd}, 2, v{vL}\nv_add_u32 v{cb_}, s{sT2}, v{cd}\nv_add_u32 v{cc}, s{sT3}, v{vL16}\nv_add_u32 v{cd}, s{sT3}, v{cd}")
    a.ds(f"ds_write_b128 v{ca}, {vr(O1,4)}")
    a.ds(f"ds_write_b128 v{ca}, {vr(O1+4,4)} offset:1024")
    a.ds(f"ds_write_b32 v{cb_}, v{O1+8} offset:2048")
    for m in range(4):
        for e in range(2):
            a.vmem(f"buffer_load_dwordx4 {vr(BO+8*m+4*e,4)}, v{vBoff}, {sr(S_WS,4)}, s{sT1 if e else sT0} offen offset:{m*1024} sc1", "bo")
    a.wait_lg(None)
    a("s_barrier")
    a.ds(f"ds_read_b128 {vr(O1,4)}, v{cc}")
    a.ds(f"ds_read_b128 {vr(O1+4,4)}, v{cc} offset:1024")
    a.ds(f"ds_read_b32 v{O1+8}, v{cd} offset:2048")
    a.vmem(f"buffer_load_dwordx4 {vr(XR,4)}, v{vXoff}, {sr(S_X,4)}, s{sXO} offen", "px")
    a(f"s_mov_b32 s{sT0}, {MOD2}")
    a.vmem(f"buffer_load_dwordx4 {vr(GAR,4)}, v{vMoff}, {sr(S_WS,4)}, s{sT0} offen sc1", "px")
    a.vmem(f"buffer_load_dwordx4 {vr(CBR,4)}, v{vMoff}, {sr(S_WS,4)}, s{sT0} offen offset:2048 sc1", "px")
    a.vmem(f"buffer_load_dwordx4 {vr(GBR,4)}, v{vMoff}, {sr(S_WS,4)}, s{sT0} offen offset:3072 sc1", "px")
    if role == "M":
        Ls = a.newlabel("nomv")
        a(f"s_cmp_ge_u32 s{sW}, 2\ns_cbranch_scc1 {Ls}")
        a(f"s_lshl_b32 s{sT1}, s{sW}, 10\ns_add_u32 m0, s{sT1}, {MV}\ns_add_u32 s{sT1}, s{sT1}, {MOD2+1024}")
        a.vmem(f"buffer_load_dwordx4 v{vL16}, {sr(S_WS,4)}, s{sT1} offen sc1 lds", None, cond=True)
        a(f"s_add_u32 s{sT1}, s{sW}, s2\ns_cmp_lg_u32 s{sT1}, 0\ns_cbranch_scc1 {Ls}")
        a(f"v_mov_b32 v{S0+4}, s{sTAG}\ns_mov_b64 exec, 1")
        a.vmem(f"buffer_store_dword v{S0+4}, off, {sr(S_WS,4)}, 0 offset:{EPOCH} sc1", None, cond=True)
        a("s_mov_b64 exec, -1")
        a.label(Ls)
    a.wait_lg(None)
    for i in range(4): a(f"v_pk_add_f32 {vr(O0+2*i,2)}, {vr(O0+2*i,2)}, {vr(O1+2*i,2)}")
    a(f"v_add_f32 v{O0+8}, v{O0+8}, v{O1+8}")
    Lfast = a.newlabel("fast")
    if not g.force_slow:
        a(f"v_cmp_nle_f32 vcc, {hex(f2u(2.0**-60))}, v{O0+8}")
        a(f"s_mov_b32 s{sT0}, {hex(f2u(2.0**60))}\nv_cmp_nge_f32 {sr(sPM,2)}, s{sT0}, v{O0+8}\ns_or_b64 vcc, vcc, {sr(sPM,2)}")
        a(f"s_nop 0\ns_cbranch_vccz {Lfast}")
    st = a.save()
    slow_path(g, par, Q0, O0, O1, S0, vV, vIdx)
    a.restore(st)
    a.label(Lfast)
    a(f"v_rcp_f32 v{O0+8}, v{O0+8}")
    for i in range(4): a(f"v_pk_mul_f32 {vr(O0+2*i,2)}, {vr(O0+2*i,2)}, {vr(O0+8,2)} op_sel_hi:[1,0]")
    for i in range(4): a(f"v_cvt_pk_bf16_f32 v{O0+i}, v{O0+2*i}, v{O0+2*i+1}")
    a(f"s_lshl_b32 s{sT0}, s{sR}, 5\ns_lshl_b32 s{sT1}, s{sJ}, 2\ns_add_u32 s{sT0}, s{sT0}, s{sT1}\ns_and_b32 s{sT1}, s{sW}, 3\ns_add_u32 s{sT0}, s{sT0}, s{sT1}")
    a(f"s_lshl_b32 s{sT0}, s{sT0}, 11\ns_add_u32 s{sT0}, s{sT0}, {OIMG + par*1024}")
    a.vmem(f"buffer_store_dwordx4 {vr(O0,4)}, v{vL16}, {sr(S_WS,4)}, s{sT0} offen sc1")
    a.wait_vm(None)
    a("s_barrier")
    post_flag(g, role, FLAG2)
    g.stamp(10)

def slow_path(g, par, Q0, O0, O1, S0, vV, vIdx):
    a = g.a
    K, V0, V1, NM, M = 12, 64, 68, O1, 5
    a.wait_vm(None)
    a(f"s_sub_u32 s{sT0}, s{sKVB}, {par*2048}\ns_mov_b32 s{sT1}, 64\nv_mov_b32 v{M}, 0xff800000")
    L1 = a.newlabel("slow1")
    a.label(L1)
    a(f"buffer_load_dwordx4 {vr(K,4)}, v{vL16}, {sr(S_WS,4)}, s{sT0} offen sc1\ns_add_u32 s{sT0}, s{sT0}, 2048\ns_waitcnt vmcnt(0)")
    a(f"v_mfma_f32_32x32x16_bf16 {vr(S0,16)}, {vr(K,4)}, {vr(Q0,4)}, 0")
    for i in range(8): a(f"v_max3_f32 v{M}, v{M}, v{S0+2*i}, v{S0+2*i+1}")
    a(f"s_sub_u32 s{sT1}, s{sT1}, 1\ns_cmp_lg_u32 s{sT1}, 0\ns_cbranch_scc1 {L1}")
    a(f"v_mov_b32 v{M+1}, v{M}\nv_permlane32_swap_b32 v{M}, v{M+1}\nv_max_f32 v{M}, v{M}, v{M+1}")
    for i in range(16): a(f"v_sub_f32 v{NM+i}, 0, v{M}\nv_mov_b32 v{O0+i}, 0")
    for i in range(8): a(f"v_mov_b32 v{V0+i}, 0x3f803f80")
    a(f"s_sub_u32 s{sT0}, s{sKVB}, {par*2048}\ns_mov_b32 s{sT1}, 64")
    L2 = a.newlabel("slow2")
    a.label(L2)
    a(f"buffer_load_dwordx4 {vr(K,4)}, v{vL16}, {sr(S_WS,4)}, s{sT0} offen sc1")
    a(f"s_mov_b64 exec, {sr(sVM,2)}")
    a(f"buffer_load_dwordx4 {vr(V0,4)}, v{vV}, {sr(S_WS,4)}, s{sT0} offen offset:1024 sc1")
    a(f"buffer_load_dwordx4 {vr(V1,4)}, v{vV}, {sr(S_WS,4)}, s{sT0} offen offset:1536 sc1")
    a(f"s_mov_b64 exec, -1\ns_add_u32 s{sT0}, s{sT0}, 2048\ns_waitcnt vmcnt(0)")
    a(f"v_mfma_f32_32x32x16_bf16 {vr(S0,16)}, {vr(K,4)}, {vr(Q0,4)}, {vr(NM,16)}")
    for i in range(16): a(f"v_exp_f32 v{S0+i}, v{S0+i}")
    a(f"v_smfmac_f32_32x32x32_bf16 {vr(O0,16)}, {vr(V0,4)}, {vr(S0,8)}, v{vIdx}")
    a(f"v_smfmac_f32_32x32x32_bf16 {vr(O0,16)}, {vr(V1,4)}, {vr(S0+8,8)}, v{vIdx}")
    a(f"s_sub_u32 s{sT1}, s{sT1}, 1\ns_cmp_lg_u32 s{sT1}, 0\ns_nop 7\ns_cbranch_scc1 {L2}")
    a("s_nop 7\ns_nop 7")

def post_flag(g, role, base):
    a = g.a
    if role != "M": return
    Ls = a.newlabel("noflag")
    a(f"s_cmp_lg_u32 s{sW}, 0\ns_cbranch_scc1 {Ls}")
    a(f"s_lshl_b32 s{sT0}, s{sR}, 3\ns_add_u32 s{sT0}, s{sT0}, s{sJ}\ns_lshl_b32 s{sT0}, s{sT0}, 7\ns_add_u32 s{sT0}, s{sT0}, {base}")
    a(f"v_mov_b32 v5, s{sTAG}\ns_mov_b64 exec, 1")
    a.vmem(f"buffer_store_dword v5, off, {sr(S_WS,4)}, s{sT0} sc1", None, cond=True)
    a("s_mov_b64 exec, -1")
    a.label(Ls)

def wait_flag(g, base, name):
    a = g.a
    a(f"s_lshl_b32 s{sT0}, s{sR}, 3\ns_add_u32 s{sT0}, s{sT0}, s{sW}\ns_lshl_b32 s{sT0}, s{sT0}, 7\ns_add_u32 s{sT0}, s{sT0}, {base}")
    a("s_mov_b64 exec, 1")
    g.poll([f"buffer_load_dword v5, off, {sr(S_WS,4)}, s{sT0} sc1"], [5], name)
    a("s_mov_b64 exec, -1")

vBoff, vXoff, vMoff = 72, 73, 74
XR, GAR, CBR, GBR = 76, 80, 84, 88
BO = 96
X2, GA, CBF = 8, 48, 56
ACC = 16
AF = 64
sXO = sLN
sRS = sLN + 1

def gemm_setup(g):
    a = g.a
    a(f"s_lshr_b32 s{sT2}, s{sW}, 2\ns_lshl_b32 s{sT3}, s{sT2}, 8\nv_xor_b32 v{vBoff}, s{sT3}, v{vL16}")
    a(f"s_lshl_b32 s{sT3}, s{sJ}, 7\ns_and_b32 s{sT4}, s{sW}, 1\ns_lshl_b32 s{sT4}, s{sT4}, 6\ns_add_u32 s{sT3}, s{sT3}, s{sT4}\ns_lshl_b32 s{sT2}, s{sT2}, 5\ns_add_u32 s{sT3}, s{sT3}, s{sT2}")
    a(f"v_lshrrev_b32 v{vMoff}, 5, v{vL}\nv_lshlrev_b32 v{vMoff}, 4, v{vMoff}\nv_add_u32 v{vMoff}, s{sT3}, v{vMoff}")
    a(f"v_and_b32 v{vXoff}, 31, v{vL}\nv_lshl_add_u32 v{vXoff}, v{vXoff}, 10, v{vMoff}")
    a(f"s_lshl_b32 s{sXO}, s{sR}, 1\ns_bfe_u32 s{sT2}, s{sW}, 0x10001\ns_add_u32 s{sXO}, s{sXO}, s{sT2}\ns_lshl_b32 s{sXO}, s{sXO}, 15")

def reduce4(g, RB, tmp, dst):
    a = g.a
    for x in range(3):
        a(f"s_xor_b32 s{sT0}, s{sW}, {(x+1) << 1}\ns_mul_i32 s{sT0}, s{sT0}, 6144\ns_add_u32 s{sT0}, s{sT0}, {RB + x*2048}\nv_add_u32 v{tmp+x}, s{sT0}, v{vL16}")
    a(f"s_mul_i32 s{sT0}, s{sW}, 6144\ns_add_u32 s{sT0}, s{sT0}, {RB}\nv_add_u32 v{tmp+3}, s{sT0}, v{vL16}")
    def run():
        for x, src in ((1, ACC + 8), (0, ACC + 16), (2, ACC + 24)):
            a.ds(f"ds_write_b128 v{tmp+x}, {vr(src,4)}")
            a.ds(f"ds_write_b128 v{tmp+x}, {vr(src+4,4)} offset:1024")
        a.wait_lg(None)
        a("s_barrier")
        for i in range(6): a.ds(f"ds_read_b128 {vr(dst+4*i,4)}, v{tmp+3} offset:{i*1024}", f"rd{i>>1}")
        for x in range(3):
            a.wait_lg(f"rd{x}")
            for i in range(4): a(f"v_pk_add_f32 {vr(ACC+2*i,2)}, {vr(ACC+2*i,2)}, {vr(dst+8*x+2*i,2)}")
    return run

def p3(g, role):
    a = g.a
    AF = 64; vA0, vA1 = 6, 7; TMP = 92
    g.unpack(X2, XR, 4); g.unpack(GA, GAR, 4); g.unpack(CBF, CBR, 4)
    a(f"s_lshr_b32 s{sT1}, s{sW}, 1\ns_lshl_b32 s{sT2}, s{sT1}, 13\ns_and_b32 s{sT1}, s{sT1}, 1\ns_lshl_b32 s{sT1}, s{sT1}, 10\ns_add_u32 s{sT2}, s{sT2}, s{sT1}")
    a(f"v_add_u32 v{vA0}, s{sT2}, v{vL16}\nv_xor_b32 v{vA1}, 1024, v{vA0}")
    red = reduce4(g, RB3, TMP, BO)
    a(f"s_lshl_b32 s{sT2}, s{sW}, 13\ns_lshl_b32 s{sT3}, s{sR}, 16\ns_add_u32 s{sT3}, s{sT3}, s{sT2}\ns_add_u32 s{sT3}, s{sT3}, {OIMG}")
    wait_flag(g, FLAG2, "o")
    g.stamp(11)
    for m in range(4):
        if m == 0: a(f"s_mov_b32 m0, s{sT2}")
        if m == 2: a(f"s_add_u32 m0, s{sT2}, 4096\ns_add_u32 s{sT3}, s{sT3}, 4096")
        for t in range(2):
            a.vmem(f"buffer_load_dwordx4 v{vL16}, {sr(S_WS,4)}, s{sT3} offen offset:{(m&1)*2048+t*1024} sc1 lds", f"a{m}")
    FA = (AF, 76)
    for m in range(4):
        a.wait_vm(f"a{m}")
        a("s_barrier")
        for e in range(2):
            a.ds(f"ds_read_b128 {vr(FA[e],4)}, v{vA0} offset:{e*32768+m*2048}", f"f{e}")
            a.ds(f"ds_read_b128 {vr(FA[e]+4,4)}, v{vA1} offset:{e*32768+m*2048}", f"f{e}")
        for e in range(2):
            a.wait_lg(f"f{e}")
            for t in range(2):
                c = "0" if (m == 0 and e == 0) else vr(ACC + 16 * t, 16)
                a(f"v_mfma_f32_32x32x16_bf16 {vr(ACC+16*t,16)}, {vr(BO+8*m+4*e,4)}, {vr(FA[e]+4*t,4)}, {c}")
    g.stamp(12)
    red()
    for i in range(4): a(f"v_pk_fma_f32 {vr(X2+2*i,2)}, {vr(ACC+2*i,2)}, {vr(GA+2*i,2)}, {vr(X2+2*i,2)}")
    for i in range(4): a(f"v_pk_mul_f32 {vr(CBF+2*i,2)}, {vr(CBF+2*i,2)}, {vr(X2+2*i,2)}")
    for i in range(4): a(f"v_cvt_pk_bf16_f32 v{CBF+i}, v{CBF+2*i}, v{CBF+2*i+1}")
    a(f"""s_and_b32 s{sT0}, s{sW}, 1
s_lshl_b32 s{sT0}, s{sT0}, 1
s_lshr_b32 s{sT1}, s{sW}, 2
s_add_u32 s{sT0}, s{sT0}, s{sT1}
s_lshl_b32 s{sT1}, s{sJ}, 2
s_add_u32 s{sT1}, s{sT1}, s{sT0}
s_lshl_b32 s{sT2}, s{sR}, 5
s_add_u32 s{sT1}, s{sT1}, s{sT2}
s_lshl_b32 s{sT1}, s{sT1}, 1
s_bfe_u32 s{sT2}, s{sW}, 0x10001
s_add_u32 s{sT1}, s{sT1}, s{sT2}
s_lshl_b32 s{sT1}, s{sT1}, 10
s_add_u32 s{sT1}, s{sT1}, {XIMG}""")
    a.vmem(f"buffer_store_dwordx4 {vr(CBF,4)}, v{vL16}, {sr(S_WS,4)}, s{sT1} offen sc1")
    T = GA
    a(f"v_pk_add_f32 {vr(T,2)}, {vr(X2,2)}, {vr(X2+2,2)}\nv_pk_mul_f32 {vr(T+2,2)}, {vr(X2,2)}, {vr(X2,2)}")
    a(f"v_pk_add_f32 {vr(T,2)}, {vr(T,2)}, {vr(X2+4,2)}\nv_pk_fma_f32 {vr(T+2,2)}, {vr(X2+2,2)}, {vr(X2+2,2)}, {vr(T+2,2)}")
    a(f"v_pk_add_f32 {vr(T,2)}, {vr(T,2)}, {vr(X2+6,2)}\nv_pk_fma_f32 {vr(T+2,2)}, {vr(X2+4,2)}, {vr(X2+4,2)}, {vr(T+2,2)}")
    a(f"v_add_f32 v{T}, v{T}, v{T+1}\nv_pk_fma_f32 {vr(T+2,2)}, {vr(X2+6,2)}, {vr(X2+6,2)}, {vr(T+2,2)}\nv_add_f32 v{T+1}, v{T+2}, v{T+3}")
    a(f"s_lshl_b32 s{sT0}, s{sT0}, 10\ns_lshl_b32 s{sT2}, s{sT2}, 8\ns_add_u32 s{sT0}, s{sT0}, s{sT2}\ns_add_u32 s{sT0}, s{sT0}, {ST1}")
    a(f"v_lshrrev_b32 v{T+2}, 5, v{vL}\nv_lshlrev_b32 v{T+2}, 8, v{T+2}\nv_lshl_add_u32 v{T+2}, v{vL}, 3, v{T+2}\nv_add_u32 v{T+2}, s{sT0}, v{T+2}")
    a.ds(f"ds_write_b64 v{T+2}, {vr(T,2)}")
    a.wait_lg(None)
    a("s_barrier")
    if role == "M":
        Ls = a.newlabel("nost")
        a(f"s_cmp_lg_u32 s{sW}, 0\ns_cbranch_scc1 {Ls}")
        a(f"v_lshlrev_b32 v{T+2}, 3, v{vL}\nv_add_u32 v{T+2}, {ST1}, v{T+2}")
        for i in range(8): a.ds(f"ds_read_b64 {vr(ACC+2*i,2)}, v{T+2} offset:{i*512}")
        a.wait_lg(None)
        for i in range(1, 8): a(f"v_pk_add_f32 {vr(ACC,2)}, {vr(ACC,2)}, {vr(ACC+2*i,2)}")
        a(f"v_mov_b32 v{ACC+2}, v{ACC+1}\nv_mov_b32 v{ACC+1}, s{sTAG}\nv_mov_b32 v{ACC+3}, s{sTAG}")
        a.label(Ls)
    a.wait_vm(None)
    a("s_barrier")
    if role == "M":
        Ls = a.newlabel("nost2")
        a(f"s_cmp_lg_u32 s{sW}, 0\ns_cbranch_scc1 {Ls}")
        a(f"s_lshl_b32 s{sT0}, s{sR}, 3\ns_add_u32 s{sT0}, s{sT0}, s{sJ}\ns_lshl_b32 s{sT0}, s{sT0}, 10\ns_add_u32 s{sT0}, s{sT0}, {STAT}")
        a.vmem(f"buffer_store_dwordx4 {vr(ACC,4)}, v{vL16}, {sr(S_WS,4)}, s{sT0} offen sc1", None, cond=True)
        a("s_nop 1")
        a.label(Ls)
    g.stamp(13)

RSTD = 75

def p4(g, role):
    a = g.a
    nt = 2 if role == "H" else 1
    vA, vM = 6, 7
    UX, UY = 48, 56
    FR = 96
    AL, BE = 76, 80
    a(f"v_lshrrev_b32 v5, 4, v{vL}\nv_lshlrev_b32 v{vM}, 4, v5\nv_bfe_u32 v{vA}, v{vL}, 3, 1\nv_xor_b32 v{vA}, 1, v{vA}\nv_lshl_add_u32 v{vM}, v{vA}, 10, v{vM}\nv_add_u32 v{vM}, {MV}, v{vM}")
    a(f"v_lshrrev_b32 v{vA}, 5, v{vL}\nv_lshlrev_b32 v{vA}, 11, v{vA}\nv_and_b32 v5, 1, v5\nv_lshl_add_u32 v{vA}, v5, 9, v{vA}\nv_and_b32 v5, 15, v{vL}\nv_lshl_add_u32 v{vA}, v5, 4, v{vA}")
    for half in range(2):
        for k in range(8): a.ds(f"ds_read_b128 {vr(FR+4*k,4)}, v{vM} offset:{(8*half+k)*64}", f"m{k}")
        for k in range(8):
            a.wait_lg(f"m{k}")
            ks = 8 * half + k
            for ct in range(nt):
                c = "0" if ks == 0 else vr(UX + 4 * ct, 4)
                a(f"v_mfma_f32_16x16x32_bf16 {vr(UX+4*ct,4)}, {vr(B1+64*ct+4*ks,4)}, {vr(FR+4*k,4)}, {c}")
    for i in range(4 * nt): a(f"v_mov_b32_dpp v{UY+i}, v{UX+i} row_ror:8 row_mask:0xf bank_mask:0xf")
    a(f"s_lshl_b32 s{sT0}, s{sR}, 3\ns_add_u32 s{sT0}, s{sT0}, s{sW}\ns_lshl_b32 s{sT0}, s{sT0}, 10\ns_add_u32 s{sT0}, s{sT0}, {STAT}")
    a(f"s_lshl_b32 s{sT2}, s{sW}, 13\ns_lshl_b32 s{sT3}, s{sR}, 16\ns_add_u32 s{sT3}, s{sT3}, s{sT2}\ns_add_u32 s{sT3}, s{sT3}, {XIMG}")
    a(f"s_lshl_b32 s{sT1}, s{sW}, 9\ns_add_u32 s{sT1}, s{sT1}, {ST2}\nv_lshlrev_b32 v{vM}, 3, v{vL}\nv_add_u32 v5, s{sT1}, v{vM}\nv_add_u32 v{vM}, {ST2}, v{vM}")
    RC = 64
    g.poll([f"buffer_load_dwordx4 {vr(RC,4)}, v{vL16}, {sr(S_WS,4)}, s{sT0} offen sc1"], [RC + 1, RC + 3], "st")
    g.stamp(14)
    for m in range(4):
        if m == 0: a(f"s_mov_b32 m0, s{sT2}")
        if m == 2: a(f"s_add_u32 m0, s{sT2}, 4096\ns_add_u32 s{sT3}, s{sT3}, 4096")
        for t in range(2):
            a.vmem(f"buffer_load_dwordx4 v{vL16}, {sr(S_WS,4)}, s{sT3} offen offset:{(m&1)*2048+t*1024} sc1 lds", f"a{m>>1}")
    a(f"v_mov_b32 v{RC+1}, v{RC+2}")
    a.ds(f"ds_write_b64 v5, {vr(RC,2)}")
    a.wait_lg(None)
    a("s_barrier")
    for i in range(8): a.ds(f"ds_read_b64 {vr(FR+2*i,2)}, v{vM} offset:{i*512}")
    a(f"v_and_b32 v5, 15, v{vL}\nv_lshlrev_b32 v5, 2, v5\nv_cmp_gt_u32 vcc, 32, v5")
    a(f"s_bfe_u32 s{sT0}, s{sW}, 0x10001\ns_lshl_b32 s{sT0}, s{sT0}, 7\nv_and_b32 v{RC+2}, 31, v{vL}\nv_lshlrev_b32 v{RC+2}, 2, v{RC+2}\nv_add_u32 v{RC+2}, s{sT0}, v{RC+2}")
    a.wait_lg(None)
    for i in range(1, 8): a(f"v_pk_add_f32 {vr(FR,2)}, {vr(FR,2)}, {vr(FR+2*i,2)}")
    a(f"v_mul_f32 v{FR}, {hex(f2u(-1/512))}, v{FR}\nv_mul_f32 v{FR+1}, {hex(f2u(1/512))}, v{FR+1}")
    a(f"v_fma_f32 v{FR+1}, -v{FR}, v{FR}, v{FR+1}\nv_max_f32 v{FR+1}, 0, v{FR+1}\nv_add_f32 v{FR+1}, {hex(f2u(1e-5))}, v{FR+1}")
    a(f"v_rsq_f32 v{FR+2}, v{FR+1}\nv_mul_f32 v{FR+1}, v{FR+1}, v{FR+2}")
    a(f"v_cndmask_b32 v{FR+3}, v{FR+1}, v{FR}, vcc\nv_cndmask_b32 v{FR+4}, v{FR}, v{FR+1}, vcc")
    for t in range(4):
        a.ds(f"ds_bpermute_b32 v{AL+t}, v5, v{FR+3} offset:{t*64}")
        a.ds(f"ds_bpermute_b32 v{BE+t}, v5, v{FR+4} offset:{t*64}")
    a.ds(f"ds_bpermute_b32 v{RSTD}, v{RC+2}, v{FR+2}")
    a.wait_lg(None)
    for ct in range(nt):
        for t in range(4):
            d = ACC + 16 * ct + 4 * t
            ps = AL + (t & ~1); pb = BE + (t & ~1); sel = t & 1
            for i in range(2):
                a(f"v_pk_mul_f32 {vr(d+2*i,2)}, {vr(UX+4*ct+2*i,2)}, {vr(ps,2)} op_sel:[0,{sel}] op_sel_hi:[1,{sel}]")
            for i in range(2):
                a(f"v_pk_fma_f32 {vr(d+2*i,2)}, {vr(UY+4*ct+2*i,2)}, {vr(pb,2)}, {vr(d+2*i,2)} op_sel:[0,{sel},0] op_sel_hi:[1,{sel},1]")
    order = [2 * k for k in range(8)] + [2 * k + 1 for k in range(8)]
    def reads(n):
        ks = order[n]; f = FR + 16 * (n & 1)
        for t in range(4): a.ds(f"ds_read_b128 {vr(f+4*t,4)}, v{vA} offset:{ks*4096+(t>>1)*1024+(t&1)*256}", f"f{n}")
    a.wait_vm("a0")
    a("s_barrier")
    g.stamp(15)
    reads(0)
    for n in range(16):
        if n + 1 == 8:
            a.wait_vm("a1")
            a("s_barrier")
        if n + 1 < 16: reads(n + 1)
        a.wait_lg(f"f{n}")
        ks = order[n]; f = FR + 16 * (n & 1)
        for t in range(4):
            for ct in range(nt):
                d = ACC + 16 * ct + 4 * t
                a(f"v_mfma_f32_16x16x32_bf16 {vr(d,4)}, {vr(B1+64*ct+4*ks,4)}, {vr(f+4*t,4)}, {vr(d,4)}")
    g.stamp(16)
    a(f"s_mul_i32 s{sT0}, s{sR}, {88*2048}\ns_lshl_b32 s{sT1}, s{sB1}, 11\ns_add_u32 s{sT0}, s{sT0}, s{sT1}\ns_add_u32 s{sT0}, s{sT0}, {HIMG}\ns_add_u32 s{sT1}, s{sT0}, 8192")
    Ls = a.newlabel("nohid")
    if role == "M": a(f"s_cmp_eq_u32 s{sW}, 3\ns_cbranch_scc1 {Ls}")
    for ct in range(nt):
        for t32 in range(2):
            d = ACC + 16 * ct + 8 * t32
            p = FR + 8 * ct + 4 * t32
            for i in range(4): a(f"v_cvt_pk_bf16_f32 v{p+i}, v{d+2*i}, v{d+2*i+1}")
            for i in range(4): a(f"v_pk_max_i16 v{p+i}, v{p+i}, 0")
            a(f"v_permlane16_swap_b32 v{p}, v{p+2}\nv_permlane16_swap_b32 v{p+1}, v{p+3}")
            a.vmem(f"buffer_store_dwordx4 {vr(p,4)}, v{vL16}, {sr(S_WS,4)}, s{sT1 if ct else sT0} offen offset:{t32*1024} sc1", "hs", cond=(role == "M"))
    if role == "M": a.label(Ls)
    a(f"s_lshl_b32 s{sT0}, s{sJ}, 1\ns_and_b32 s{sT1}, s{sW}, 1\ns_add_u32 s{sT0}, s{sT0}, s{sT1}\ns_mul_i32 s{sT0}, s{sT0}, {88*1024}")
    a(f"s_lshr_b32 s{sT1}, s{sW}, 1\ns_mul_i32 s{sT1}, s{sT1}, {11*1024}\ns_add_u32 s{sT0}, s{sT0}, s{sT1}\ns_add_u32 s{sT2}, s{sT0}, {W2I}\ns_add_u32 s{sT3}, s{sT2}, {44*1024}")
    for m in range(11):
        if m and m % 4 == 0: a(f"s_add_u32 s{sT2}, s{sT2}, 4096\ns_add_u32 s{sT3}, s{sT3}, 4096")
        for e in range(2):
            a.vmem(f"buffer_load_dwordx4 {vr(B1+8*m+4*e,4)}, v{vBoff}, {sr(S_WS,4)}, s{sT3 if e else sT2} offen offset:{(m&3)*1024} sc1", "b2")
    a.wait_vm("hs")
    a("s_barrier")
    post_flag(g, role, FLAG4)
    g.stamp(17)

def p5(g, role):
    a = g.a
    vA = 48
    TMP = 92; GB = 64; FA = (96, 104, 112, 120)
    g.unpack(GB, GBR, 4)
    for i in range(8): a(f"v_mul_f32 v{GB+i}, v{GB+i}, v{RSTD}")
    a(f"s_lshr_b32 s{sT1}, s{sW}, 1\ns_lshl_b32 s{sT2}, s{sT1}, 11\ns_and_b32 s{sT1}, s{sT1}, 1\ns_lshl_b32 s{sT1}, s{sT1}, 10\ns_add_u32 s{sT2}, s{sT2}, s{sT1}")
    a(f"v_add_u32 v{vA}, s{sT2}, v{vL16}\nv_xor_b32 v{vA+1}, 1024, v{vA}")
    for k in (1, 2):
        a(f"v_add_u32 v{vA+2*k}, {k*65536}, v{vA}\nv_add_u32 v{vA+2*k+1}, {k*65536}, v{vA+1}")
    red = reduce4(g, RB5, TMP, 96)
    a(f"s_lshl_b32 s{sT2}, s{sW}, 11\ns_mul_i32 s{sT3}, s{sR}, {88*2048}\ns_mul_i32 s{sT1}, s{sW}, {11*2048}\ns_add_u32 s{sT3}, s{sT3}, s{sT1}\ns_add_u32 s{sT3}, s{sT3}, {HIMG}")
    wait_flag(g, FLAG4, "h")
    g.stamp(18)
    def dma(m):
        a(f"s_add_u32 m0, s{sT2}, {(m % 9) * 16384}")
        if m: a(f"s_add_u32 s{sT3}, s{sT3}, 2048")
        for t in range(2):
            a.vmem(f"buffer_load_dwordx4 v{vL16}, {sr(S_WS,4)}, s{sT3} offen offset:{t*1024} sc1 lds", f"a{m}")
    for m in range(9): dma(m)
    def reads(m):
        slot = m % 9
        for e in range(2):
            f = FA[2 * (m & 1) + e]
            off = slot * 16384 + e * 8192
            k = off >> 16; off &= 65535
            a.ds(f"ds_read_b128 {vr(f,4)}, v{vA+2*k} offset:{off}", f"f{m}")
            a.ds(f"ds_read_b128 {vr(f+4,4)}, v{vA+2*k+1} offset:{off}", f"f{m}")
    def mf(m):
        for e in range(2):
            f = FA[2 * (m & 1) + e]
            for t in range(2):
                c = "0" if (m == 0 and e == 0) else vr(ACC + 16 * t, 16)
                a(f"v_mfma_f32_32x32x16_bf16 {vr(ACC+16*t,16)}, {vr(B1+8*m+4*e,4)}, {vr(f+4*t,4)}, {c}")
    for m in range(11):
        a.wait_vm(f"a{m}")
        if m: a.wait_lg(f"f{m-1}")
        a("s_barrier")
        if m in (1, 2): dma(m + 8)
        reads(m)
        if m: mf(m - 1)
    a.wait_lg("f10")
    mf(10)
    g.stamp(19)
    red()
    for i in range(4): a(f"v_pk_fma_f32 {vr(X2+2*i,2)}, {vr(ACC+2*i,2)}, {vr(GB+2*i,2)}, {vr(X2+2*i,2)}")
    for i in range(4): a(f"v_cvt_pk_bf16_f32 v{X2+i}, v{X2+2*i}, v{X2+2*i+1}")
    a.vmem(f"buffer_store_dwordx4 {vr(X2,4)}, v{vXoff}, {sr(S_OUT,4)}, s{sXO} offen")
    g.stamp(20)
```

```python
import sys, math
from dsl import *

KNAME = "adaLN_cond__softmax_full_mha__dense_activation_relu__prompt_kernel"

EPOCH  = 0
MODG   = 0x1000
MOD2   = 0x4000
FLAG1B = 0x6000
FLAG2  = 0x8000
FLAG4  = 0x10000
FLAG1  = 0x20000
STAT   = 0x40000
WOI    = 0x80000
KV     = 0x100000
OIMG   = 0x500000
XIMG   = 0x700000
HIMG   = 0x900000
W1I    = 0xE80000
W2I    = 0xFE0000
WSEND  = 0x1140000
LOG    = 0x1200000
WSSIZE = 0x1400000

WRING = 65536
SLOT  = 24576
QX    = WRING + SLOT
CB    = WRING + 2 * SLOT
RB3   = 65536
RB5   = 32768
MV    = 147456
ST1   = MV + 2048
ST2   = ST1 + 4096
LDSSZ = 163840

S_WS, S_X, S_WQ, S_WM, S_C, S_RL, S_OUT = 4, 8, 12, 16, 20, 24, 28
S_PWO, S_PW1, S_PW2 = 32, 36, 38
sW, sXCD, sI, sR, sJ, sTAG = 40, 41, 42, 43, 44, 45
sT0, sT1, sT2, sT3, sT4, sT5, sCNT = 46, 47, 48, 49, 50, 51, 52
sVM = 54
sKVB, sKVO = 56, 57
sB1, sB1b = 58, 59
sU0, sU1, sU2, sU3 = 60, 61, 62, 63
sLN = 64
sST = 96
sPM = 98
POLL_LIMIT = 400000

LOG2E = 1.4426950408889634
def f2u(x):
    import struct
    return struct.unpack("<I", struct.pack("<f", x))[0]

class Gen:
    def __init__(self, stamps=False, stop_after=None, force_slow=False):
        self.a = Asm()
        self.stamps = stamps
        self.stop_after = stop_after
        self.force_slow = force_slow
        self.nstamp = 0

    def stamp(self, idx):
        if not self.stamps: return
        a = self.a
        a(f"s_memtime {sr(sST,2)}")
        a("s_waitcnt lgkmcnt(0)"); a.lg = []
        a(f"v_writelane_b32 v{self.vstamp}, s{sST}, {idx}")

    def flush_stamps(self):
        if not self.stamps: return
        a = self.a
        a(f"s_lshl_b32 s{sT0}, s2, 3\ns_add_u32 s{sT0}, s{sT0}, s{sW}\ns_lshl_b32 s{sT0}, s{sT0}, 8\ns_add_u32 s{sT0}, s{sT0}, {LOG}")
        a(f"v_lshlrev_b32 v4, 2, v0")
        a.vmem(f"buffer_store_dword v{self.vstamp}, v4, {sr(S_WS,4)}, s{sT0} offen")

    def poll(self, loads, cmps, name):
        a = self.a
        L = a.newlabel("poll_" + name); Ld = a.newlabel("pdone_" + name)
        a(f"s_mov_b32 s{sCNT}, {POLL_LIMIT}")
        a.label(L)
        for ld in loads: a(ld)
        a(f"s_sub_u32 s{sCNT}, s{sCNT}, 1\ns_cmp_eq_u32 s{sCNT}, 0")
        a("s_waitcnt vmcnt(0)"); a.vm = []
        a(f"s_cbranch_scc1 {Ld}")
        for n, v in enumerate(cmps):
            if n == 0: a(f"v_cmp_ne_u32 vcc, s{sTAG}, v{v}")
            else:
                a(f"v_cmp_ne_u32 {sr(sPM,2)}, v{v}, s{sTAG}")
                a(f"s_or_b64 vcc, vcc, {sr(sPM,2)}")
        a("s_nop 0")
        a(f"s_cbranch_vccnz {L}")
        a.label(Ld)

    def unpack(self, dst, src, n):
        a = self.a
        for i in range(n):
            a(f"v_and_b32 v{dst+2*i+1}, 0xffff0000, v{src+i}")
            a(f"v_lshlrev_b32 v{dst+2*i}, 16, v{src+i}")

    def swap23(self, dst, src, tmp):
        a = self.a
        a(f"v_and_b32 v{tmp}, 4, v{src}\nv_lshlrev_b32 v{tmp}, 1, v{tmp}")
        a(f"v_and_b32 v{dst}, 0xfffffff3, v{src}") if dst != src else None
        assert dst != src
        a(f"v_or_b32 v{dst}, v{dst}, v{tmp}")
        a(f"v_and_b32 v{tmp}, 8, v{src}\nv_lshrrev_b32 v{tmp}, 1, v{tmp}\nv_or_b32 v{dst}, v{dst}, v{tmp}")

    def gemv_issue(self, base, s_col, vL16):
        a = self.a
        vC, vWm, vOff = base, base + 4, base + 36
        a.vmem(f"buffer_load_dwordx4 {vr(vC,4)}, v{vL16}, {sr(S_C,4)}, 0 offen", "gc")
        a(f"v_mul_u32_u24 v{vOff}, 3072, v{vL16}")
        for n in range(8):
            a.vmem(f"buffer_load_dwordx4 {vr(vWm+4*n,4)}, v{vOff}, {sr(S_WM,4)}, s{s_col} offen", f"gw{n}")
            if n < 7: a(f"s_add_u32 s{s_col}, s{s_col}, 6144")
    def gemv_finish(self, base, s_add):
        a = self.a
        vC, vWm = base, base + 4
        vS, vT, vAcc = base + 40, base + 48, base + 56
        a.wait_vm("gc")
        self.unpack(vS, vC, 4)
        for i in range(8): a(f"v_mul_f32 v{vT+i}, {hex(f2u(-LOG2E))}, v{vS+i}")
        for i in range(8): a(f"v_exp_f32 v{vT+i}, v{vT+i}")
        for i in range(8): a(f"v_add_f32 v{vT+i}, 1.0, v{vT+i}")
        for i in range(8): a(f"v_rcp_f32 v{vT+i}, v{vT+i}")
        for i in range(8): a(f"v_mul_f32 v{vS+i}, v{vS+i}, v{vT+i}")
        for i in range(4): a(f"v_cvt_pk_bf16_f32 v{vC+i}, v{vS+2*i}, v{vS+2*i+1}")
        self.unpack(vS, vC, 4)
        for n in range(8):
            a.wait_vm(f"gw{n}")
            self.unpack(vT, vWm + 4 * n, 4)
            sp = vS + (n & ~1); sel = n & 1
            for i in range(4):
                if n == 0:
                    a(f"v_pk_mul_f32 {vr(vAcc+2*i,2)}, {vr(vT+2*i,2)}, {vr(sp,2)} op_sel:[0,{sel}] op_sel_hi:[1,{sel}]")
                else:
                    a(f"v_pk_fma_f32 {vr(vAcc+2*i,2)}, {vr(vT+2*i,2)}, {vr(sp,2)}, {vr(vAcc+2*i,2)} op_sel:[0,{sel},0] op_sel_hi:[1,{sel},1]")
        for i in range(4): a(f"v_permlane32_swap_b32 v{vAcc+i}, v{vAcc+i+4}")
        for i in range(4): a(f"v_add_f32 v{vAcc+i}, v{vAcc+i}, v{vAcc+i+4}")
        for i in range(2): a(f"v_permlane16_swap_b32 v{vAcc+i}, v{vAcc+i+2}")
        for i in range(2): a(f"v_add_f32 v{vAcc+i}, v{vAcc+i}, v{vAcc+i+2}")
        for sh in (8, 4, 2, 1):
            for i in range(2): a(f"v_add_f32_dpp v{vAcc+i}, v{vAcc+i}, v{vAcc+i} row_ror:{sh} row_mask:0xf bank_mask:0xf")
        a(f"v_cvt_pk_bf16_f32 v{vAcc+2}, v{vAcc}, v{vAcc+1}")
        self.unpack(vAcc, vAcc + 2, 1)
        a(f"v_add_f32 v{vAcc}, s{s_add}, v{vAcc}\nv_add_f32 v{vAcc+1}, s{s_add}, v{vAcc+1}")
        a(f"v_cvt_pk_bf16_f32 v{vAcc}, v{vAcc}, v{vAcc+1}")
        return vAcc

    def wdma(self, vOff, n, tag):
        a = self.a
        a(f"s_add_u32 s{sT0}, s{sXCD}, {n}\ns_and_b32 s{sT0}, s{sT0}, 7\ns_mul_i32 s{sT0}, s{sT0}, {64*3072}")
        a(f"s_add_u32 s{sT0}, s{sT0}, s{sU0}")
        for o in range(2):
            a(f"s_add_u32 m0, s{sU1}, {WRING + (n & 3) * SLOT + o * 3072}")
            if o: a(f"s_add_u32 s{sT0}, s{sT0}, {8*3072}")
            for kind in range(3):
                a.vmem(f"buffer_load_dwordx4 v{vOff}, {sr(S_WQ,4)}, s{sT0} offen offset:{kind*1024} lds", tag)

    def dma_lane_off(self, dst, vL, t0, t1, pitch):
        a = self.a
        a(f"v_lshrrev_b32 v{t0}, 5, v{vL}\nv_bfe_u32 v{t1}, v{vL}, 2, 2\nv_lshl_add_u32 v{t0}, v{t0}, 2, v{t1}")
        a(f"v_mul_u32_u24 v{dst}, {pitch}, v{t0}")
        a(f"v_bfe_u32 v{t0}, v{vL}, 4, 1\nv_lshl_add_u32 v{dst}, v{t0}, 6, v{dst}")
        a(f"v_and_b32 v{t0}, 3, v{vL}\nv_lshl_add_u32 v{dst}, v{t0}, 4, v{dst}")

    def prologue(self):
        a = self.a
        a(f"s_cmp_ge_u32 s2, 256\ns_cbranch_scc1 L_exit")
        a(f"""s_load_dwordx2 {sr(S_WM,2)}, s[0:1], 56
s_load_dwordx2 {sr(S_C,2)}, s[0:1], 48
s_load_dwordx2 {sr(S_WS,2)}, s[0:1], 80
s_load_dwordx2 {sr(S_X,2)}, s[0:1], 0
s_load_dwordx2 {sr(S_WQ,2)}, s[0:1], 8
s_load_dwordx2 {sr(S_OUT,2)}, s[0:1], 64
s_load_dwordx2 {sr(S_PWO,2)}, s[0:1], 16
s_load_dwordx4 {sr(S_PW1,4)}, s[0:1], 32""")
        a(f"v_lshrrev_b32 v1, 6, v0\nv_and_b32 v0, 63, v0\nv_readfirstlane_b32 s{sW}, v1\nv_lshlrev_b32 v2, 4, v0")
        for s, n in ((S_WS, WSSIZE if self.stamps else WSEND), (S_X, 2097152), (S_WQ, 1572864), (S_WM, 3145728), (S_C, 1024), (S_OUT, 2097152)):
            a(f"s_mov_b32 s{s+2}, {n}\ns_mov_b32 s{s+3}, 0x20000")
        a(f"""s_and_b32 s{sXCD}, s2, 7
s_lshr_b32 s{sI}, s2, 3
s_lshr_b32 s{sT0}, s{sI}, 3
s_lshl_b32 s{sR}, s{sXCD}, 2
s_add_u32 s{sR}, s{sR}, s{sT0}
s_and_b32 s{sJ}, s{sI}, 7
s_mov_b32 s{sVM}, 0xffff
s_mov_b32 s{sVM+1}, 0xffff
s_and_b32 s{sT0}, s{sW}, 3
s_mul_i32 s{sU0}, s{sT0}, {16*3072}
s_lshl_b32 s{sT1}, s{sJ}, 7
s_add_u32 s{sU0}, s{sU0}, s{sT1}
s_mul_i32 s{sU1}, s{sT0}, 6144""")
        self.dma_lane_off(3, 0, 4, 5, 3072)
        a("s_waitcnt lgkmcnt(0)")
        a(f"s_load_dword s{sTAG}, {sr(S_WS,2)}, {EPOCH}")
        a(f"s_cmp_ge_u32 s{sW}, 4\ns_cbranch_scc1 L_H")

    def get_tag(self):
        self.a("s_waitcnt lgkmcnt(0)"); self.a.lg = []
        self.a(f"s_add_u32 s{sTAG}, s{sTAG}, 0x9e3779b9")

    def p1_M(self):
        a = self.a
        vL, vL16, vWoff = 0, 2, 3
        G = 128
        Lno = a.newlabel("nomod1")
        a(f"s_lshl_b32 s{sT0}, s{sW}, 5\ns_add_u32 s{sT0}, s{sT0}, s{sI}\ns_cmp_ge_u32 s{sT0}, 16\ns_cbranch_scc1 {Lno}")
        st = a.save()
        a(f"""s_lshr_b32 s{sT1}, s{sI}, 3
s_and_b32 s{sT2}, s{sI}, 7
s_lshl_b32 s{sT3}, s{sXCD}, 3
s_add_u32 s{sT2}, s{sT2}, s{sT3}
s_lshl_b32 s{sU2}, s{sT1}, 10
s_lshl_b32 s{sT3}, s{sT2}, 4
s_add_u32 s{sU2}, s{sU2}, s{sT3}
s_lshl_b32 s{sU3}, s{sU2}, 1
s_add_u32 s{sU3}, s{sU3}, {MODG}
s_mul_i32 s{sT5}, s{sT1}, 0x3f800000""")
        self.gemv_issue(G, sU2, vL16)
        self.wdma(vWoff, 0, "w0")
        self.get_tag()
        res = self.gemv_finish(G, sT5)
        a(f"v_mov_b32 v{res+1}, s{sTAG}\nv_lshrrev_b32 v{res+2}, 1, v{vL}")
        a(f"s_mov_b32 exec_lo, 0x10001\ns_mov_b32 exec_hi, 0x10001")
        a.vmem(f"buffer_store_dwordx2 {vr(res,2)}, v{res+2}, {sr(S_WS,4)}, s{sU3} offen sc1", "mst")
        a("s_mov_b64 exec, -1")
        a.wait_vm("w0")
        Lj = a.newlabel("join1")
        a(f"s_branch {Lj}")
        a.label(Lno)
        a.restore(st)
        self.wdma(vWoff, 0, "w0")
        self.get_tag()
        a.wait_vm("w0")
        a.label(Lj)
        a.vm = []
        self.stamp(1)
        for n in (1, 2, 3): self.wdma(vWoff, n, f"w{n}")
        vA, vAc, vW0, vW1, vKst, vVst, vQ = 8, 12, 16, 17, 18, 19, 20
        t0, t1, t2 = 4, 5, 6
        a(f"s_and_b32 s{sT1}, s{sW}, 1\ns_lshr_b32 s{sT2}, s{sW}, 1")
        a(f"v_and_b32 v{t0}, 31, v{vL}\nv_lshlrev_b32 v{t0}, 10, v{t0}\ns_lshl_b32 s{sT3}, s{sT1}, 15\nv_add_u32 v{t0}, s{sT3}, v{t0}")
        a(f"v_lshrrev_b32 v{t1}, 5, v{vL}\nv_and_b32 v{t2}, 15, v{vL}\nv_xor_b32 v{t2}, v{t2}, v{t1}\nv_lshl_add_u32 v{vA}, v{t2}, 4, v{t0}")
        for k in range(1, 4): a(f"v_xor_b32 v{vA+k}, {k << 5}, v{vA}")
        a(f"v_mul_u32_u24 v{vW0}, 3072, v{t1}\nv_bfe_u32 v{t0}, v{vL}, 2, 2\nv_lshl_add_u32 v{vW0}, v{t0}, 6, v{vW0}")
        a(f"v_bfe_u32 v{t0}, v{vL}, 4, 1\nv_lshl_add_u32 v{vW0}, v{t0}, 5, v{vW0}\nv_and_b32 v{t0}, 3, v{vL}\nv_lshl_add_u32 v{vW0}, v{t0}, 3, v{vW0}")
        a(f"s_lshl_b32 s{sT3}, s{sT2}, 8\ns_add_u32 s{sT3}, s{sT3}, {WRING}\nv_add_u32 v{vW0}, s{sT3}, v{vW0}\nv_add_u32 v{vW1}, {2*SLOT}, v{vW0}")
        self.swap23(t0, vL, t2)
        a(f"v_lshlrev_b32 v{vKst}, 4, v{t0}")
        a(f"v_and_b32 v{t0}, 15, v{t0}\nv_lshlrev_b32 v{t0}, 4, v{t0}\nv_lshl_add_u32 v{t0}, v{t1}, 8, v{t0}")
        a(f"v_bfe_u32 v{t2}, v{vL}, 4, 1\nv_lshl_add_u32 v{vVst}, v{t2}, 17, v{t0}")
        a(f"s_lshl_b32 s{sT3}, s{sT2}, 12\ns_lshl_b32 s{sT4}, s{sT1}, 10\ns_add_u32 s{sT3}, s{sT3}, s{sT4}\ns_add_u32 s{sT3}, s{sT3}, {QX}\nv_add_u32 v{vQ}, s{sT3}, v{vL16}")
        a(f"""s_lshl_b32 s{sU2}, s{sJ}, 1
s_add_u32 s{sU2}, s{sU2}, s{sT2}
s_lshl_b32 s{sU2}, s{sU2}, 18
s_lshl_b32 s{sT3}, s{sR}, 1
s_add_u32 s{sT3}, s{sT3}, s{sT1}
s_lshl_b32 s{sT3}, s{sT3}, 11
s_add_u32 s{sU2}, s{sU2}, s{sT3}
s_add_u32 s{sU2}, s{sU2}, {KV}
s_add_u32 s{sU3}, s{sU2}, 131072""")
        ACC = 32
        FR = 80
        NSET = 3
        def reads(step):
            n, ks = step >> 2, step & 3
            f = FR + 16 * (step % NSET)
            if ks == 0:
                a(f"s_add_u32 s{sT0}, s{sXCD}, {n}\ns_and_b32 s{sT0}, s{sT0}, 7\ns_lshl_b32 s{sT0}, s{sT0}, 7")
                for k in range(4): a(f"v_xor_b32 v{vAc+k}, s{sT0}, v{vA+k}")
            a.ds(f"ds_read_b128 {vr(f,4)}, v{vAc+ks}", f"f{step}")
            vb = vW0 if (n & 3) < 2 else vW1
            for kind in range(3):
                for kq in range(2):
                    off = (n & 1) * SLOT + ks * 6144 + kind * 1024 + kq * 512
                    a.ds(f"ds_read_b64_tr_b16 {vr(f+4+4*kind+2*kq,2)}, v{vb} offset:{off}", f"f{step}")
        def mfmas(step):
            f = FR + 16 * (step % NSET)
            for kind in range(3):
                c = "0" if step == 0 else vr(ACC + 16 * kind, 16)
                A, B = (vr(f + 4 + 4 * kind, 4), vr(f, 4)) if kind < 2 else (vr(f, 4), vr(f + 4 + 4 * kind, 4))
                a(f"v_mfma_f32_32x32x16_bf16 {vr(ACC+16*kind,16)}, {A}, {B}, {c}")
        a("s_barrier")
        self.stamp(2)
        reads(0); reads(1)
        for step in range(32):
            nxt = step + 2
            if nxt < 32:
                if (nxt & 3) == 0:
                    a.wait_lg(None)
                    if (nxt >> 2) <= 3: a.wait_vm(f"w{nxt >> 2}")
                    a("s_barrier")
                    reads(nxt)
                else:
                    a.wait_lg(f"f{step}")
                    reads(nxt)
            else:
                a.wait_lg(f"f{step}")
            mfmas(step)
        self.stamp(3)
        PK = 80
        for i in range(8): a(f"v_cvt_pk_bf16_f32 v{PK+i}, v{ACC+16+2*i}, v{ACC+17+2*i}")
        a.vmem(f"buffer_store_dwordx4 {vr(PK,4)}, v{vKst}, {sr(S_WS,4)}, s{sU2} offen sc1", "kv")
        a.vmem(f"buffer_store_dwordx4 {vr(PK+4,4)}, v{vKst}, {sr(S_WS,4)}, s{sU3} offen sc1", "kv")
        for i in range(8): a(f"v_cvt_pk_bf16_f32 v{PK+8+i}, v{ACC+32+2*i}, v{ACC+33+2*i}")
        a.vmem(f"buffer_store_dwordx4 {vr(PK+8,4)}, v{vVst}, {sr(S_WS,4)}, s{sU2} offen offset:1024 sc1", "kv")
        a.vmem(f"buffer_store_dwordx4 {vr(PK+12,4)}, v{vVst}, {sr(S_WS,4)}, s{sU2} offen offset:1536 sc1", "kv")
        a(f"s_mov_b32 s{sT0}, {hex(f2u(0.25*LOG2E))}")
        for i in range(16): a(f"v_mul_f32 v{ACC+i}, s{sT0}, v{ACC+i}")
        for i in range(8): a(f"v_cvt_pk_bf16_f32 v{PK+16+i}, v{ACC+2*i}, v{ACC+1+2*i}")
        a.ds(f"ds_write_b128 v{vQ}, {vr(PK+16,4)}")
        a.ds(f"ds_write_b128 v{vQ}, {vr(PK+20,4)} offset:2048")
        a.wait_lg(None)
        a("s_barrier")
        a(f"s_lshl_b32 s{sT0}, s{sJ}, 2\ns_add_u32 s{sT0}, s{sT0}, s{sW}\ns_lshl_b32 s{sT0}, s{sT0}, 5\ns_add_u32 s{sT0}, s{sT0}, s{sR}\ns_lshl_b32 s{sT0}, s{sT0}, 7\ns_add_u32 s{sT0}, s{sT0}, {FLAG1}")
        a(f"v_mov_b32 v4, s{sTAG}")
        a.wait_vm(None)
        a("s_mov_b64 exec, 1")
        a.vmem(f"buffer_store_dword v4, off, {sr(S_WS,4)}, s{sT0} sc1")
        a("s_mov_b64 exec, -1")
        self.stamp(4)

    def p1_H(self):
        a = self.a
        vL, vL16, vWoff = 0, 2, 3
        F = 128
        X = 64
        a(f"s_sub_u32 s{sT5}, s{sW}, 4\ns_lshl_b32 s{sT0}, s{sR}, 16\ns_lshl_b32 s{sT1}, s{sT5}, 14\ns_add_u32 s{sT0}, s{sT0}, s{sT1}")
        for rr in range(16):
            a.vmem(f"buffer_load_dwordx4 {vr(X+4*rr,4)}, v{vL16}, {sr(S_X,4)}, s{sT0} offen offset:{(rr&3)*1024}", f"x{rr}")
            if (rr & 3) == 3 and rr < 15: a(f"s_add_u32 s{sT0}, s{sT0}, 4096")
        vHA = 48
        a(f"v_add_u32 v{vHA}, s{sT1}, v{vL16}")
        for rr in range(1, 16): a(f"v_xor_b32 v{vHA+rr}, {rr << 4}, v{vHA}")
        self.get_tag()
        Sv, Qv, T = 16, 32, 4
        for rr in range(16):
            a.wait_vm(f"x{rr}")
            f = F + 8 * rr
            self.unpack(f, X + 4 * rr, 4)
            a(f"v_pk_add_f32 {vr(T,2)}, {vr(f,2)}, {vr(f+2,2)}")
            a(f"v_pk_mul_f32 {vr(T+2,2)}, {vr(f,2)}, {vr(f,2)}")
            a(f"v_pk_add_f32 {vr(T,2)}, {vr(T,2)}, {vr(f+4,2)}")
            a(f"v_pk_fma_f32 {vr(T+2,2)}, {vr(f+2,2)}, {vr(f+2,2)}, {vr(T+2,2)}")
            a(f"v_pk_add_f32 {vr(T,2)}, {vr(T,2)}, {vr(f+6,2)}")
            a(f"v_pk_fma_f32 {vr(T+2,2)}, {vr(f+4,2)}, {vr(f+4,2)}, {vr(T+2,2)}")
            a(f"v_add_f32 v{Sv+rr}, v{T}, v{T+1}")
            a(f"v_pk_fma_f32 {vr(T+2,2)}, {vr(f+6,2)}, {vr(f+6,2)}, {vr(T+2,2)}")
            a(f"v_add_f32 v{Qv+rr}, v{T+2}, v{T+3}")
        self.stamp(1)
        for rr in range(16): a(f"v_permlane32_swap_b32 v{Sv+rr}, v{Qv+rr}")
        for rr in range(16): a(f"v_add_f32 v{Sv+rr}, v{Sv+rr}, v{Qv+rr}")
        for i in range(8): a(f"v_permlane16_swap_b32 v{Sv+i}, v{Sv+i+8}")
        for i in range(8): a(f"v_add_f32 v{Sv+i}, v{Sv+i}, v{Sv+i+8}")
        for i in range(4):
            a(f"v_add_f32_dpp v{Qv+i}, v{Sv+i}, v{Sv+i} row_ror:8 row_mask:0xf bank_mask:0x3")
            a(f"v_add_f32_dpp v{Qv+i}, v{Sv+i+4}, v{Sv+i+4} row_ror:8 row_mask:0xf bank_mask:0xc")
        for i in range(2):
            a(f"v_add_f32_dpp v{Sv+i}, v{Qv+i}, v{Qv+i} row_half_mirror row_mask:0xf bank_mask:0x5")
            a(f"v_add_f32_dpp v{Sv+i}, v{Qv+i+2}, v{Qv+i+2} row_half_mirror row_mask:0xf bank_mask:0xa")
        for qp in ("[1,0,3,2]", "[2,3,0,1]"):
            for i in range(2): a(f"v_add_f32_dpp v{Sv+i}, v{Sv+i}, v{Sv+i} quad_perm:{qp} row_mask:0xf bank_mask:0xf")
        a(f"v_permlane32_swap_b32 v{Sv}, v{Sv+1}")
        a(f"v_mul_f32 v{Sv}, {hex(f2u(1/512))}, v{Sv}\nv_mul_f32 v{Sv+1}, {hex(f2u(1/512))}, v{Sv+1}")
        a(f"v_fma_f32 v{Sv+1}, -v{Sv}, v{Sv}, v{Sv+1}\nv_max_f32 v{Sv+1}, 0, v{Sv+1}\nv_add_f32 v{Sv+1}, {hex(f2u(1e-5))}, v{Sv+1}")
        a(f"v_rsq_f32 v{Sv+1}, v{Sv+1}\nv_mul_f32 v{Sv}, v{Sv}, v{Sv+1}\nv_sub_f32 v{Sv}, 0, v{Sv}")
        for rr in range(16):
            ln = 32 * (rr & 1) + 16 * (rr >> 3) + 8 * ((rr >> 2) & 1) + 4 * ((rr >> 1) & 1)
            a(f"v_readlane_b32 s{sLN+2*rr}, v{Sv+1}, {ln}\nv_readlane_b32 s{sLN+2*rr+1}, v{Sv}, {ln}")
        for rr in range(16):
            for i in range(4):
                f = F + 8 * rr + 2 * i
                a(f"v_pk_fma_f32 {vr(f,2)}, {vr(f,2)}, {sr(sLN+2*rr,2)}, {sr(sLN+2*rr,2)} op_sel:[0,0,1] op_sel_hi:[1,0,1]")
        self.stamp(2)
        MG = 64; vG = 4
        a(f"v_lshlrev_b32 v{vG}, 1, v{vL16}\ns_mov_b32 s{sT0}, {MODG}")
        lds = [f"buffer_load_dwordx4 {vr(MG+4*i,4)}, v{vG}, {sr(S_WS,4)}, s{sT0} offen offset:{(i>>1)*2048+(i&1)*16} sc1" for i in range(4)]
        self.poll(lds, [MG + 2 * i + 1 for i in range(8)], "mod")
        self.stamp(3)
        SA, CA = 16, 24
        for i in range(4):
            self.unpack(SA + 2 * i, MG + 2 * i, 1)
            self.unpack(CA + 2 * i, MG + 8 + 2 * i, 1)
        for rr in range(16):
            f = F + 8 * rr
            o = 80 + 4 * (rr & 3)
            for i in range(4): a(f"v_pk_fma_f32 {vr(f+2*i,2)}, {vr(f+2*i,2)}, {vr(CA+2*i,2)}, {vr(SA+2*i,2)}")
            for i in range(4): a(f"v_cvt_pk_bf16_f32 v{f+i}, v{f+2*i}, v{f+2*i+1}")
            a.ds(f"ds_write_b128 v{vHA+rr}, {vr(f,4)} offset:{rr*1024}")
        a.wait_lg(None)
        a("s_barrier")
        self.stamp(4)
        sU, sP, sDst, sSA, sSB, sDA, sDB, sSrc = sLN, sLN+1, sLN+2, sLN+3, sLN+4, sLN+5, sLN+6, sLN+7
        sAdd, sCol, sM2 = sLN+8, sLN+9, sLN+10
        La, Lb, Lj = a.newlabel("rl_w2"), a.newlabel("rl_w1"), a.newlabel("rl_j")
        vRo, vRa = 8, 12
        t0, t1, t2 = 4, 5, 6
        a(f"s_lshl_b32 s{sU}, s{sT5}, 8\ns_add_u32 s{sU}, s{sU}, s2\ns_mov_b32 s{S_RL+3}, 0x20000")
        a(f"s_cmp_ge_u32 s{sU}, 480\ns_cbranch_scc1 {Lb}")
        a(f"""s_cmp_ge_u32 s{sU}, 128
s_cselect_b32 s{S_RL}, s{S_PW2}, s{S_PWO}
s_cselect_b32 s{S_RL+1}, s{S_PW2+1}, s{S_PWO+1}
s_cselect_b32 s{S_RL+2}, {1376*1024}, {512*1024 if False else 0}
s_cselect_b32 s{sT0}, 128, 0
s_cselect_b32 s{sDB}, 88, 32
s_cselect_b32 s{sDst}, {W2I - WOI}, 0
s_max_u32 s{S_RL+2}, s{S_RL+2}, {512*1024}
s_add_u32 s{sDst}, s{sDst}, {WOI}
s_lshl_b32 s{sDB}, s{sDB}, 10
s_sub_u32 s{sT0}, s{sU}, s{sT0}
s_and_b32 s{sT1}, s{sT0}, 7
s_lshr_b32 s{sT0}, s{sT0}, 3
s_mov_b32 s{sP}, 1024
s_lshl_b32 s{sSrc}, s{sT0}, 15
s_lshl_b32 s{sT2}, s{sT1}, 7
s_add_u32 s{sSrc}, s{sSrc}, s{sT2}
s_mul_i32 s{sT2}, s{sT1}, s{sDB}
s_lshl_b32 s{sT2}, s{sT2}, 1
s_add_u32 s{sDst}, s{sDst}, s{sT2}
s_lshl_b32 s{sT2}, s{sT0}, 11
s_add_u32 s{sDst}, s{sDst}, s{sT2}
s_mov_b32 s{sDA}, 1024
s_mov_b32 s{sSA}, 2048
s_mov_b32 s{sSB}, 256""")
        self.dma_lane_off(vRo, vL, t0, t1, 1024)
        a(f"v_lshrrev_b32 v{t0}, 5, v{vL}\nv_lshlrev_b32 v{vRa}, 10, v{t0}")
        a(f"v_bfe_u32 v{t0}, v{vL}, 4, 1\nv_lshl_add_u32 v{vRa}, v{t0}, 5, v{vRa}")
        a(f"v_and_b32 v{t0}, 1, v{vL}\nv_lshl_add_u32 v{vRa}, v{t0}, 4, v{vRa}")
        a(f"v_bfe_u32 v{t0}, v{vL}, 1, 1\nv_lshl_add_u32 v{vRa}, v{t0}, 3, v{vRa}")
        a(f"s_branch {Lj}")
        a.label(Lb)
        a(f"""s_mov_b32 s{S_RL}, s{S_PW1}
s_mov_b32 s{S_RL+1}, s{S_PW1+1}
s_cmp_lt_u32 s{sU}, 832
s_cselect_b32 s{S_RL+2}, {512*2752}, 0
s_sub_u32 s{sT0}, s{sU}, 480
s_and_b32 s{sT1}, s{sT0}, 15
s_lshr_b32 s{sT0}, s{sT0}, 4
s_mov_b32 s{sP}, 2752
s_mul_i32 s{sSrc}, s{sT1}, {32*2752}
s_lshl_b32 s{sT2}, s{sT0}, 7
s_add_u32 s{sSrc}, s{sSrc}, s{sT2}
s_lshl_b32 s{sDst}, s{sT0}, 16
s_lshl_b32 s{sT2}, s{sT1}, 10
s_add_u32 s{sDst}, s{sDst}, s{sT2}
s_add_u32 s{sDst}, s{sDst}, {W1I}
s_mov_b32 s{sDA}, 32768
s_mov_b32 s{sDB}, 16384
s_mov_b32 s{sSA}, 256
s_mov_b32 s{sSB}, 32
s_cmp_eq_u32 s{sT0}, 21
s_cselect_b32 s{sT2}, 0x400000, 0""")
        self.dma_lane_off(vRo, vL, t0, t1, 2752)
        a(f"v_bfe_u32 v{t0}, v{vL}, 4, 1\nv_mul_u32_u24 v{t0}, s{sT2}, v{t0}\nv_add_u32 v{vRo}, v{vRo}, v{t0}")
        a(f"v_lshrrev_b32 v{t0}, 4, v{vL}\nv_lshlrev_b32 v{vRa}, 10, v{t0}")
        a(f"v_and_b32 v{t0}, 3, v{vL}\nv_lshl_add_u32 v{vRa}, v{t0}, 3, v{vRa}")
        a.label(Lj)
        a(f"v_bfe_u32 v{t0}, v{vL}, 2, 2\nv_lshl_add_u32 v{vRa}, v{t0}, 6, v{vRa}")
        a(f"s_lshl_b32 s{sT0}, s{sT5}, 12\ns_add_u32 s{sU2}, s{sT0}, {WRING}\nv_add_u32 v{vRa}, s{sU2}, v{vRa}")
        a(f"v_add_u32 v{vRa+1}, s{sSB}, v{vRa}\nv_add_u32 v{vRa+2}, s{sSA}, v{vRa}\nv_add_u32 v{vRa+3}, s{sSA}, v{vRa+1}")
        a(f"s_lshl_b32 s{sP}, s{sP}, 3")
        a(f"""s_lshl_b32 s{sM2}, s{sR}, 7
s_lshl_b32 s{sT0}, s{sJ}, 4
s_add_u32 s{sM2}, s{sM2}, s{sT0}
s_add_u32 s{sCol}, s{sM2}, 2048
s_add_u32 s{sM2}, s{sM2}, {MOD2}
s_lshr_b32 s{sT0}, s{sR}, 3
s_cmp_eq_u32 s{sT0}, 2
s_cselect_b32 s{sAdd}, 1.0, 0""")
        G = 128
        for n in range(7):
            if n + 1 >= 4: a.wait_vm(f"w{n+1}")
            a("s_barrier")
            if n <= 3: self.wdma(vWoff, n + 4, f"w{n+4}")
            if n == 4:
                for o in range(4):
                    a(f"s_add_u32 m0, s{sU2}, {o*1024}")
                    a.vmem(f"buffer_load_dwordx4 v{vRo}, {sr(S_RL,4)}, s{sSrc} offen lds", "rl")
                    if o < 3: a(f"s_add_u32 s{sSrc}, s{sSrc}, s{sP}")
        Lg = a.newlabel("nog2")
        a(f"s_cmp_lg_u32 s{sW}, 7\ns_cbranch_scc1 {Lg}")
        a.vm = []
        self.gemv_issue(G, sCol, vL16)
        st = a.save()
        a.label(Lg)
        a("s_barrier")
        self.stamp(5)
        Lg = a.newlabel("nog2b")
        a(f"s_cmp_lg_u32 s{sW}, 7\ns_cbranch_scc1 {Lg}")
        res = self.gemv_finish(G, sAdd)
        a(f"v_lshrrev_b32 v{res+2}, 2, v{vL}")
        a(f"s_mov_b32 exec_lo, 0x10001\ns_mov_b32 exec_hi, 0x10001")
        a.vmem(f"buffer_store_dword v{res}, v{res+2}, {sr(S_WS,4)}, s{sM2} offen sc1")
        a("s_mov_b64 exec, -1")
        a.label(Lg)
        Ls = a.newlabel("norl2")
        a(f"s_cmp_ge_u32 s{sU}, 832\ns_cbranch_scc1 {Ls}")
        a.wait_vm(None)
        RT = 16
        for f in range(4):
            for kq in range(2):
                a.ds(f"ds_read_b64_tr_b16 {vr(RT+4*f+2*kq,2)}, v{vRa+f} offset:{kq*512}", f"r{f}")
        a(f"s_add_u32 s{sT1}, s{sDst}, s{sDB}\ns_add_u32 s{sT2}, s{sDst}, s{sDA}\ns_add_u32 s{sT3}, s{sT1}, s{sDA}")
        for f, sd in enumerate((sDst, sT1, sT2, sT3)):
            a.wait_lg(f"r{f}")
            a.vmem(f"buffer_store_dwordx4 {vr(RT+4*f,4)}, v{vL16}, {sr(S_WS,4)}, s{sd} offen sc1")
        a.label(Ls)
        a("s_nop 1")
        a.vm = []
        self.stamp(6)

    def end(self):
        self.flush_stamps()
        self.a("s_endpgm")

    def role(self, r):
        a = self.a
        a.vm = []; a.lg = []
        self.vstamp = 1
        if self.stamps: a(f"v_mov_b32 v{self.vstamp}, 0")
        self.stamp(0)
        (self.p1_M if r == "M" else self.p1_H)()
        if self.stop_after == 1: return self.end()
        from phases import p2, p3, p4, p5
        p2(self, r)
        if self.stop_after == 2: return self.end()
        p3(self, r)
        if self.stop_after == 3: return self.end()
        p4(self, r)
        if self.stop_after == 4: return self.end()
        p5(self, r)
        self.end()

    def build(self):
        a = self.a
        self.prologue()
        self.role("M")
        a.label("L_H")
        self.role("H")
        a.label("L_exit")
        a("s_endpgm")
        rep = []
        body, added = fix_hazards(a.L, rep)
        self.hazard_report = rep
        hdr = open("adaLN_cond__softmax_full_mha__dense_activation_relu__prompt.s.ref").read().split("; Override launch")[0]
        src = hdr + f"; @launch grid=(256,1,1) block=(512,1,1) lds={LDSSZ}\n"
        src += f'.amdgcn_target "amdgcn-amd-amdhsa--gfx950"\n.text\n.globl {KNAME}\n.p2align 8\n.type {KNAME},@function\n{KNAME}:\n'
        src += "\n".join(body) + "\n"
        src += f""".section .rodata,"a"
.p2align 6
.amdhsa_kernel {KNAME}
  .amdhsa_next_free_vgpr 256
  .amdhsa_next_free_sgpr 102
  .amdhsa_accum_offset 256
  .amdhsa_group_segment_fixed_size 0
  .amdhsa_kernarg_size 88
  .amdhsa_user_sgpr_count 2
  .amdhsa_user_sgpr_kernarg_segment_ptr 1
  .amdhsa_system_sgpr_workgroup_id_x 1
.end_amdhsa_kernel
"""
        return src

if __name__ == "__main__":
    import argparse
    ap = argparse.ArgumentParser()
    ap.add_argument("-o", default="out.s")
    ap.add_argument("--stamps", action="store_true")
    ap.add_argument("--stop", type=int, default=None)
    ap.add_argument("--slow", action="store_true")
    ap.add_argument("--rep", action="store_true")
    args = ap.parse_args()
    g = Gen(stamps=args.stamps, stop_after=args.stop, force_slow=args.slow)
    s = g.build()
    open(args.o, "w").write(s)
    if args.rep:
        for r in g.hazard_report: print(r)
    print("wrote", args.o, len(s), "bytes;", len(g.hazard_report), "nops inserted", file=sys.stderr)
```

```python
from dsl import *
from mega import *

vL, vL16 = 0, 2
vXoff, vBoff = 6, 7
B1 = 128
BO = 80
XR = 112
X2 = 8
ACC = 16
UX, UY = 112, 120
RSTD = 108
sXO = sLN
sCO = sLN + 1
sB2a, sB2b = sLN + 2, sLN + 3
sBOa, sBOb = sLN + 4, sLN + 5
P4_ORDER = [2 * k for k in range(8)] + [2 * k + 1 for k in range(8)]

def b2reg(role, f):
    if role == "M":
        return 192 + 4 * f if f < 16 else B1 + 4 * P4_ORDER[f - 16]
    return B1 + 64 * (f & 1) + 4 * P4_ORDER[f >> 1]

def ld_b2(g, role, f):
    a = g.a
    m, e = f >> 1, f & 1
    if m and m % 4 == 0:
        s = sB2b if e else sB2a
        a(f"s_add_u32 s{s}, s{s}, 4096")
    a.vmem(f"buffer_load_dwordx4 {vr(b2reg(role,f),4)}, v{vBoff}, {sr(S_WS,4)}, s{sB2b if e else sB2a} offen offset:{(m&3)*1024} sc1", "b2")

def gemm_setup(g):
    a = g.a
    a(f"s_lshr_b32 s{sT2}, s{sW}, 2\ns_lshl_b32 s{sT3}, s{sT2}, 8\nv_xor_b32 v{vBoff}, s{sT3}, v{vL16}")
    a(f"s_and_b32 s{sT4}, s{sW}, 1\ns_lshl_b32 s{sCO}, s{sT4}, 6\ns_lshl_b32 s{sT2}, s{sT2}, 5\ns_add_u32 s{sCO}, s{sCO}, s{sT2}")
    a(f"v_lshrrev_b32 v5, 5, v{vL}\nv_lshlrev_b32 v5, 4, v5\nv_and_b32 v{vXoff}, 31, v{vL}\nv_lshl_add_u32 v{vXoff}, v{vXoff}, 10, v5")
    a(f"s_lshl_b32 s{sXO}, s{sR}, 1\ns_bfe_u32 s{sT2}, s{sW}, 0x10001\ns_add_u32 s{sXO}, s{sXO}, s{sT2}\ns_lshl_b32 s{sXO}, s{sXO}, 15")
    a(f"s_lshl_b32 s{sT2}, s{sJ}, 7\ns_add_u32 s{sXO}, s{sXO}, s{sT2}\ns_add_u32 s{sXO}, s{sXO}, s{sCO}")
    a(f"s_lshl_b32 s{sT2}, s{sJ}, 1\ns_add_u32 s{sT2}, s{sT2}, s{sT4}\ns_lshr_b32 s{sT3}, s{sW}, 1")
    a(f"s_lshl_b32 s{sBOa}, s{sT2}, 15\ns_lshl_b32 s{sT4}, s{sT3}, 12\ns_add_u32 s{sBOa}, s{sBOa}, s{sT4}\ns_add_u32 s{sBOa}, s{sBOa}, {WOI}\ns_add_u32 s{sBOb}, s{sBOa}, 16384")
    a(f"s_mul_i32 s{sB2a}, s{sT2}, {88*1024}\ns_mul_i32 s{sT3}, s{sT3}, {11*1024}\ns_add_u32 s{sB2a}, s{sB2a}, s{sT3}\ns_add_u32 s{sB2a}, s{sB2a}, {W2I}\ns_add_u32 s{sB2b}, s{sB2a}, {44*1024}")

def p2(g, role):
    a = g.a
    vV, vIdx = 3, 4
    Q0, Q1, O0, O1, S0, S1, RING = 8, 12, 16, 32, 48, 64, 80
    NST = 4
    t0, t1 = 5, 48
    par = 1 if role == "H" else 0
    gemm_setup(g)
    a(f"s_and_b32 s{sT1}, s{sW}, 3")
    a(f"s_lshl_b32 s{sT0}, s{sJ}, 2\ns_add_u32 s{sT0}, s{sT0}, s{sT1}\ns_lshl_b32 s{sKVB}, s{sT0}, 17\ns_add_u32 s{sKVB}, s{sKVB}, {KV + par*2048}")
    a(f"v_lshrrev_b32 v{t0}, 5, v{vL}\nv_and_b32 v{t1}, 15, v{vL}\nv_lshlrev_b32 v{t1}, 4, v{t1}\nv_lshl_add_u32 v{vV}, v{t0}, 8, v{t1}")
    a(f"v_mov_b32 v{vIdx}, 0xdddddddd")
    a(f"s_lshl_b32 s{sT2}, s{sT1}, 11\ns_add_u32 s{sT2}, s{sT2}, {QX}\nv_add_u32 v{t0}, s{sT2}, v{vL16}")
    a.ds(f"ds_read_b128 {vr(Q0,4)}, v{t0} offset:{par*1024}")
    a.ds(f"ds_read_b128 {vr(Q1,4)}, v{t0} offset:{(1-par)*1024}")
    for i in range(32): a(f"v_mov_b32 v{O0+i}, 0")
    for s in range(NST):
        for i in range(8): a(f"v_mov_b32 v{RING+12*s+4+i}, 0x3f803f80")
    if role == "H":
        a(f"s_mul_i32 s{sB1}, s{sJ}, 11\ns_add_u32 s{sB1}, s{sB1}, s{sT1}")
    else:
        a(f"s_mul_i32 s{sB1}, s{sJ}, 11\ns_min_u32 s{sT2}, s{sT1}, 2\ns_add_u32 s{sB1}, s{sB1}, s{sT2}\ns_add_u32 s{sB1}, s{sB1}, 8")
    a(f"s_lshl_b32 s{sB1b}, s{sB1}, 14\ns_add_u32 s{sB1b}, s{sB1b}, {W1I}")
    a(f"s_lshr_b32 s{sT2}, s{sT1}, 1\ns_lshl_b32 s{sT2}, s{sT2}, 1\ns_lshl_b32 s{sT3}, s{sJ}, 2\ns_add_u32 s{sT2}, s{sT2}, s{sT3}\ns_add_u32 s{sT2}, s{sT2}, {par}")
    a(f"s_lshl_b32 s{sT2}, s{sT2}, 12\ns_add_u32 s{sT2}, s{sT2}, {FLAG1}")
    FLA, FLG = 252, 253
    a(f"v_and_b32 v{FLA}, 31, v{vL}\nv_lshlrev_b32 v{FLA}, 7, v{FLA}")
    a.wait_lg(None)
    g.poll([f"buffer_load_dword v{t0}, v{FLA}, {sr(S_WS,4)}, s{sT2} offen sc1"], [t0], "kv")
    g.stamp(8)
    a(f"s_lshl_b32 s{sKVO}, s{sR}, 12")
    def kv_addr():
        return [f"s_add_u32 s{sT0}, s{sKVB}, s{sKVO}", f"s_add_u32 s{sKVO}, s{sKVO}, 4096", f"s_and_b32 s{sKVO}, s{sKVO}, 0x1ffff"]
    def ldK(n):
        r = RING + 12 * (n % NST)
        a.vmem(f"buffer_load_dwordx4 {vr(r,4)}, v{vL16}, {sr(S_WS,4)}, s{sT0} offen sc1", f"k{n}")
    def ldV(n):
        r = RING + 12 * (n % NST)
        a(f"s_mov_b64 exec, {sr(sVM,2)}")
        a.vmem(f"buffer_load_dwordx4 {vr(r+4,4)}, v{vV}, {sr(S_WS,4)}, s{sT0} offen offset:1024 sc1", f"v{n}")
        a.vmem(f"buffer_load_dwordx4 {vr(r+8,4)}, v{vV}, {sr(S_WS,4)}, s{sT0} offen offset:1536 sc1", f"v{n}")
        a("s_mov_b64 exec, -1")
    for n in range(NST - 1):
        for x in kv_addr(): a(x)
        ldK(n); ldV(n)
    prio = {int(k): int(v) for k, v in (x.split(":") for x in g.opts.get("prio", "0:3,14:2,24:1,30:0").split(",") if x)}
    a.wait_vm("k0")
    a(f"v_mfma_f32_32x32x16_bf16 {vr(S0,16)}, {vr(RING,4)}, {vr(Q0,4)}, 0")
    def ex(S, lo, hi):
        for i in range(lo, hi): a(f"v_exp_f32 v{S+i}, v{S+i}")
    def smf(O, V, P): a(f"v_smfmac_f32_32x32x32_bf16 {vr(O,16)}, {vr(V,4)}, {vr(P,8)}, v{vIdx}")
    side = [0]
    def ldside(cnt):
        for _ in range(cnt):
            n = side[0]
            if n >= 32: return
            if role == "M" and n >= 16: ld_b2(g, role, n - 16)
            else:
                if n and n % 4 == 0:
                    a(f"s_add_u32 s{sB1b}, s{sB1b}, {4096 if n != 16 else 4096 + 3*16384}")
                a.vmem(f"buffer_load_dwordx4 {vr(B1+4*n,4)}, v{vL16}, {sr(S_WS,4)}, s{sB1b} offen offset:{(n&3)*1024} sc1", "b1")
            side[0] += 1
    def ldBO(f):
        m, e = f >> 1, f & 1
        a.vmem(f"buffer_load_dwordx4 {vr(BO+4*f,4)}, v{vBoff}, {sr(S_WS,4)}, s{sBOb if e else sBOa} offen offset:{m*1024} sc1", "bo")
    ST_BAR, ST_LDF, ST_CHK = 4, 9, 12
    for n in range(32):
        cur = RING + 12 * (n % NST); nx = RING + 12 * ((n + 1) % NST); pv = RING + 12 * ((n - 1) % NST)
        ex(S0, 0, 2)
        if n > 0: smf(O1, pv + 8, S1 + 8)
        pre = n + NST - 1
        if pre < 32:
            ka = kv_addr()
            a(ka[0]); ldK(pre)
        else:
            ldBO(3 * (n - 29))
        ex(S0, 2, 5)
        a(f"v_mfma_f32_32x32x16_bf16 {vr(S1,16)}, {vr(cur,4)}, {vr(Q1,4)}, 0")
        a.wait_vm(f"v{n}")
        ex(S0, 5, 10)
        smf(O0, cur + 4, S0)
        if pre < 32: ldV(pre)
        else:
            ldBO(3 * (n - 29) + 1)
            if n < 31: ldBO(3 * (n - 29) + 2)
            else: a.vmem(f"buffer_load_dwordx4 {vr(XR,4)}, v{vXoff}, {sr(S_X,4)}, s{sXO} offen", "px")
        ex(S0, 10, 16)
        ex(S1, 0, 2)
        smf(O0, cur + 8, S0 + 8)
        if n + 1 < 32: a.wait_vm(f"k{n+1}")
        if n in prio: a(f"s_setprio {prio[n]}")
        if n > ST_CHK: ldside(1)
        ex(S1, 2, 5)
        if n + 1 < 32: a(f"v_mfma_f32_32x32x16_bf16 {vr(S0,16)}, {vr(nx,4)}, {vr(Q0,4)}, 0")
        if pre < 32: a(ka[1])
        ex(S1, 5, 10)
        smf(O1, cur + 4, S1)
        if pre < 32: a(ka[2])
        if n == ST_BAR:
            a("s_barrier")
            if role == "H":
                Ls = a.newlabel("nof1b")
                a(f"s_cmp_lg_u32 s{sW}, 4\ns_cbranch_scc1 {Ls}")
                a(f"s_lshl_b32 s{sT1}, s{sJ}, 5\ns_add_u32 s{sT1}, s{sT1}, s{sR}\ns_lshl_b32 s{sT1}, s{sT1}, 7\ns_add_u32 s{sT1}, s{sT1}, {FLAG1B}\nv_mov_b32 v{t0}, s{sTAG}\ns_mov_b64 exec, 1")
                a.vmem(f"buffer_store_dword v{t0}, off, {sr(S_WS,4)}, s{sT1} sc1", None, cond=True)
                a("s_mov_b64 exec, -1")
                a.label(Ls)
        if n == ST_LDF:
            a(f"s_lshl_b32 s{sT1}, s{sJ}, 12\ns_add_u32 s{sT1}, s{sT1}, {FLAG1B}")
            a.vmem(f"buffer_load_dword v{FLG}, v{FLA}, {sr(S_WS,4)}, s{sT1} offen sc1", "flg")
        if n == ST_CHK:
            a.wait_vm("flg")
            Lok = a.newlabel("f1bok")
            a(f"v_cmp_ne_u32 vcc, s{sTAG}, v{FLG}")
            a(f"s_nop 0\ns_cbranch_vccz {Lok}")
            st = a.save()
            g.poll([f"buffer_load_dword v{FLG}, v{FLA}, {sr(S_WS,4)}, s{sT1} offen sc1"], [FLG], "f1b")
            a.restore(st)
            a.label(Lok)
        if n > ST_CHK: ldside(1)
        ex(S1, 10, 16)
        if g.opts.get("astamp") and n in (7, 15, 23): g.stamp(21 + n // 8)
    cur = RING + 12 * (31 % NST)
    a(f"s_mul_i32 s{sT2}, s{sW}, 2304\ns_add_u32 s{sT2}, s{sT2}, {CB}")
    smf(O1, cur + 8, S1 + 8)
    assert side[0] == 32
    g.stamp(9)
    a(f"s_xor_b32 s{sT3}, s{sW}, 4\ns_mul_i32 s{sT3}, s{sT3}, 2304\ns_add_u32 s{sT3}, s{sT3}, {CB}")
    ca, cb_, cc, cd = S0, S0 + 1, S0 + 2, S0 + 3
    a(f"v_add_u32 v{ca}, s{sT2}, v{vL16}\nv_lshlrev_b32 v{cd}, 2, v{vL}\nv_add_u32 v{cb_}, s{sT2}, v{cd}\nv_add_u32 v{cc}, s{sT3}, v{vL16}\nv_add_u32 v{cd}, s{sT3}, v{cd}")
    a(f"s_lshl_b32 s{sT2}, s{sR}, 5\ns_lshl_b32 s{sT1}, s{sJ}, 2\ns_add_u32 s{sT2}, s{sT2}, s{sT1}\ns_and_b32 s{sT1}, s{sW}, 3\ns_add_u32 s{sT2}, s{sT2}, s{sT1}")
    a(f"s_lshl_b32 s{sT2}, s{sT2}, 11\ns_add_u32 s{sT2}, s{sT2}, {OIMG + par*1024}")
    a.ds(f"ds_write_b128 v{ca}, {vr(O1,4)}")
    a.ds(f"ds_write_b128 v{ca}, {vr(O1+4,4)} offset:1024")
    a.ds(f"ds_write_b32 v{cb_}, v{O1+8} offset:2048")
    a.wait_lg(None)
    a("s_barrier")
    a.ds(f"ds_read_b32 v{O1+8}, v{cd} offset:2048", "l")
    a.ds(f"ds_read_b128 {vr(O1,4)}, v{cc}")
    a.ds(f"ds_read_b128 {vr(O1+4,4)}, v{cc} offset:1024")
    a(f"s_mov_b32 s{sT0}, {hex(f2u(2.0**60))}")
    a.wait_lg("l")
    a(f"v_add_f32 v{O0+8}, v{O0+8}, v{O1+8}")
    Lfast = a.newlabel("fast")
    if not g.force_slow:
        a(f"v_cmp_nle_f32 vcc, {hex(f2u(2.0**-60))}, v{O0+8}")
        a(f"v_cmp_nge_f32 {sr(sPM,2)}, s{sT0}, v{O0+8}")
    a.wait_lg(None)
    for i in range(4): a(f"v_pk_add_f32 {vr(O0+2*i,2)}, {vr(O0+2*i,2)}, {vr(O1+2*i,2)}")
    if not g.force_slow:
        a(f"s_or_b64 vcc, vcc, {sr(sPM,2)}")
        a(f"s_cbranch_vccz {Lfast}")
    st = a.save()
    slow_path(g, par, Q0, O0, O1, S0, vV, vIdx)
    a.restore(st)
    a.label(Lfast)
    a(f"v_rcp_f32 v{O0+8}, v{O0+8}")
    for i in range(4): a(f"v_pk_mul_f32 {vr(O0+2*i,2)}, {vr(O0+2*i,2)}, {vr(O0+8,2)} op_sel_hi:[1,0]")
    for i in range(4): a(f"v_cvt_pk_bf16_f32 v{S0+i}, v{O0+2*i}, v{O0+2*i+1}")
    a.vmem(f"buffer_store_dwordx4 {vr(S0,4)}, v{vL16}, {sr(S_WS,4)}, s{sT2} offen sc1", "os")
    nt = 2 if role == "H" else 1
    vM = 3; FR = 16
    a(f"v_lshrrev_b32 v5, 4, v{vL}\nv_lshlrev_b32 v{vM}, 4, v5\nv_bfe_u32 v5, v{vL}, 3, 1\nv_xor_b32 v5, 1, v5\nv_lshl_add_u32 v{vM}, v5, 10, v{vM}\nv_add_u32 v{vM}, {MV}, v{vM}")
    a.wait_vm("px")
    g.unpack(X2, XR, 4)
    for half in range(2):
        for k in range(8): a.ds(f"ds_read_b128 {vr(FR+4*k,4)}, v{vM} offset:{(8*half+k)*64}", f"m{k}")
        for k in range(8):
            a.wait_lg(f"m{k}")
            ks = 8 * half + k
            for ct in range(nt):
                c = "0" if ks == 0 else vr(UX + 4 * ct, 4)
                a(f"v_mfma_f32_16x16x32_bf16 {vr(UX+4*ct,4)}, {vr(B1+64*ct+4*ks,4)}, {vr(FR+4*k,4)}, {c}")
        if half == 0:
            a.wait_vm(None)
            a("s_barrier")
            post_flag(g, role, FLAG2)
            g.stamp(10)
    for i in range(4 * nt): a(f"v_mov_b32_dpp v{UY+i}, v{UX+i} row_ror:8 row_mask:0xf bank_mask:0xf")

def slow_path(g, par, Q0, O0, O1, S0, vV, vIdx):
    a = g.a
    K, V0, V1, NM, M = 12, 64, 68, O1, 72
    a.wait_vm(None)
    a(f"s_sub_u32 s{sT0}, s{sKVB}, {par*2048}\ns_mov_b32 s{sT1}, 64\nv_mov_b32 v{M}, 0xff800000")
    L1 = a.newlabel("slow1")
    a.label(L1)
    a(f"buffer_load_dwordx4 {vr(K,4)}, v{vL16}, {sr(S_WS,4)}, s{sT0} offen sc1\ns_add_u32 s{sT0}, s{sT0}, 2048\ns_waitcnt vmcnt(0)")
    a(f"v_mfma_f32_32x32x16_bf16 {vr(S0,16)}, {vr(K,4)}, {vr(Q0,4)}, 0")
    for i in range(8): a(f"v_max3_f32 v{M}, v{M}, v{S0+2*i}, v{S0+2*i+1}")
    a(f"s_sub_u32 s{sT1}, s{sT1}, 1\ns_cmp_lg_u32 s{sT1}, 0\ns_cbranch_scc1 {L1}")
    a(f"v_mov_b32 v{M+1}, v{M}\nv_permlane32_swap_b32 v{M}, v{M+1}\nv_max_f32 v{M}, v{M}, v{M+1}")
    for i in range(16): a(f"v_sub_f32 v{NM+i}, 0, v{M}\nv_mov_b32 v{O0+i}, 0")
    for i in range(8): a(f"v_mov_b32 v{V0+i}, 0x3f803f80")
    a(f"s_sub_u32 s{sT0}, s{sKVB}, {par*2048}\ns_mov_b32 s{sT1}, 64")
    L2 = a.newlabel("slow2")
    a.label(L2)
    a(f"buffer_load_dwordx4 {vr(K,4)}, v{vL16}, {sr(S_WS,4)}, s{sT0} offen sc1")
    a(f"s_mov_b64 exec, {sr(sVM,2)}")
    a(f"buffer_load_dwordx4 {vr(V0,4)}, v{vV}, {sr(S_WS,4)}, s{sT0} offen offset:1024 sc1")
    a(f"buffer_load_dwordx4 {vr(V1,4)}, v{vV}, {sr(S_WS,4)}, s{sT0} offen offset:1536 sc1")
    a(f"s_mov_b64 exec, -1\ns_add_u32 s{sT0}, s{sT0}, 2048\ns_waitcnt vmcnt(0)")
    a(f"v_mfma_f32_32x32x16_bf16 {vr(S0,16)}, {vr(K,4)}, {vr(Q0,4)}, {vr(NM,16)}")
    for i in range(16): a(f"v_exp_f32 v{S0+i}, v{S0+i}")
    a(f"v_smfmac_f32_32x32x32_bf16 {vr(O0,16)}, {vr(V0,4)}, {vr(S0,8)}, v{vIdx}")
    a(f"v_smfmac_f32_32x32x32_bf16 {vr(O0,16)}, {vr(V1,4)}, {vr(S0+8,8)}, v{vIdx}")
    a(f"s_sub_u32 s{sT1}, s{sT1}, 1\ns_cmp_lg_u32 s{sT1}, 0\ns_nop 7\ns_cbranch_scc1 {L2}")
    a("s_nop 7\ns_nop 7")

def post_flag(g, role, base):
    a = g.a
    if role != "M": return
    Ls = a.newlabel("noflag")
    a(f"s_cmp_lg_u32 s{sW}, 0\ns_cbranch_scc1 {Ls}")
    a(f"s_lshl_b32 s{sT0}, s{sR}, 3\ns_add_u32 s{sT0}, s{sT0}, s{sJ}\ns_lshl_b32 s{sT0}, s{sT0}, 7\ns_add_u32 s{sT0}, s{sT0}, {base}")
    a(f"v_mov_b32 v5, s{sTAG}\ns_mov_b64 exec, 1")
    a.vmem(f"buffer_store_dword v5, off, {sr(S_WS,4)}, s{sT0} sc1", None, cond=True)
    a("s_mov_b64 exec, -1")
    a.label(Ls)

def wait_flag(g, base, name):
    a = g.a
    a(f"s_lshl_b32 s{sT0}, s{sR}, 3\ns_add_u32 s{sT0}, s{sT0}, s{sW}\ns_lshl_b32 s{sT0}, s{sT0}, 7\ns_add_u32 s{sT0}, s{sT0}, {base}")
    a("s_mov_b64 exec, 1")
    g.poll([f"buffer_load_dword v5, off, {sr(S_WS,4)}, s{sT0} sc1"], [5], name)
    a("s_mov_b64 exec, -1")

def reduce4(g, RB, tmp, dst):
    a = g.a
    for x in range(3):
        a(f"s_xor_b32 s{sT0}, s{sW}, {(x+1) << 1}\ns_mul_i32 s{sT0}, s{sT0}, 6144\ns_add_u32 s{sT0}, s{sT0}, {RB + x*2048}\nv_add_u32 v{tmp+x}, s{sT0}, v{vL16}")
    for x, src in ((1, ACC + 8), (0, ACC + 16), (2, ACC + 24)):
        a.ds(f"ds_write_b128 v{tmp+x}, {vr(src,4)}")
        a.ds(f"ds_write_b128 v{tmp+x}, {vr(src+4,4)} offset:1024")
    a(f"s_mul_i32 s{sT0}, s{sW}, 6144\ns_add_u32 s{sT0}, s{sT0}, {RB}\nv_add_u32 v{tmp+3}, s{sT0}, v{vL16}")
    a.wait_lg(None)
    a("s_barrier")
    for i in range(6): a.ds(f"ds_read_b128 {vr(dst+4*i,4)}, v{tmp+3} offset:{i*1024}", f"rd{i>>1}")
    for x in range(3):
        a.wait_lg(f"rd{x}")
        for i in range(4): a(f"v_pk_add_f32 {vr(ACC+2*i,2)}, {vr(ACC+2*i,2)}, {vr(dst+8*x+2*i,2)}")

def mod_piece(g, dst, tmp, ldsbase, s_extra=None):
    a = g.a
    a(f"v_lshrrev_b32 v5, 5, v{vL}\nv_lshlrev_b32 v5, 4, v5\ns_add_u32 s{sT0}, s{sCO}, {ldsbase}")
    if s_extra is not None: a(f"s_add_u32 s{sT0}, s{sT0}, s{s_extra}")
    a(f"v_add_u32 v5, s{sT0}, v5")
    a.ds(f"ds_read_b128 {vr(tmp,4)}, v5")
    a.wait_lg(None)
    g.unpack(dst, tmp, 4)

def p3(g, role):
    a = g.a
    vA0, vA1 = 3, 4
    GA, CBF = 48, 56
    FA = (64, 72)
    mod_piece(g, GA, 64, MV2)
    a(f"s_lshl_b32 s{sT1}, s{sJ}, 7")
    mod_piece(g, CBF, 64, MV + 1024, sT1)
    a(f"s_lshr_b32 s{sT1}, s{sW}, 1\ns_lshl_b32 s{sT2}, s{sT1}, 13\ns_and_b32 s{sT1}, s{sT1}, 1\ns_lshl_b32 s{sT1}, s{sT1}, 10\ns_add_u32 s{sT2}, s{sT2}, s{sT1}")
    a(f"v_add_u32 v{vA0}, s{sT2}, v{vL16}\nv_xor_b32 v{vA1}, 1024, v{vA0}")
    a(f"s_lshl_b32 s{sT2}, s{sW}, 13\ns_lshl_b32 s{sT3}, s{sR}, 16\ns_add_u32 s{sT3}, s{sT3}, s{sT2}\ns_add_u32 s{sT3}, s{sT3}, {OIMG}\ns_mov_b32 m0, s{sT2}")
    wait_flag(g, FLAG2, "o")
    g.stamp(11)
    for m in range(4):
        if m == 2: a(f"s_add_u32 m0, s{sT2}, 4096\ns_add_u32 s{sT3}, s{sT3}, 4096")
        for t in range(2):
            a.vmem(f"buffer_load_dwordx4 v{vL16}, {sr(S_WS,4)}, s{sT3} offen offset:{(m&1)*2048+t*1024} sc1 lds", f"a{m}")
    a(f"""s_and_b32 s{sT4}, s{sW}, 1
s_lshl_b32 s{sT4}, s{sT4}, 1
s_lshr_b32 s{sT1}, s{sW}, 2
s_add_u32 s{sT4}, s{sT4}, s{sT1}
s_lshl_b32 s{sT1}, s{sJ}, 2
s_add_u32 s{sT1}, s{sT1}, s{sT4}
s_lshl_b32 s{sT2}, s{sR}, 5
s_add_u32 s{sT1}, s{sT1}, s{sT2}
s_lshl_b32 s{sT1}, s{sT1}, 1
s_bfe_u32 s{sT2}, s{sW}, 0x10001
s_add_u32 s{sT1}, s{sT1}, s{sT2}
s_lshl_b32 s{sT1}, s{sT1}, 10
s_add_u32 s{sT1}, s{sT1}, {XIMG}
s_lshl_b32 s{sT4}, s{sT4}, 10
s_lshl_b32 s{sT2}, s{sT2}, 8
s_add_u32 s{sT4}, s{sT4}, s{sT2}
s_add_u32 s{sT4}, s{sT4}, {ST1}""")
    def rd(s):
        m, e = s >> 1, s & 1
        a.ds(f"ds_read_b128 {vr(FA[e],4)}, v{vA0} offset:{e*32768+m*2048}", f"f{s}")
        a.ds(f"ds_read_b128 {vr(FA[e]+4,4)}, v{vA1} offset:{e*32768+m*2048}", f"f{s}")
    def mf(s):
        e = s & 1
        a.wait_lg(f"f{s}")
        for t in range(2):
            c = "0" if s == 0 else vr(ACC + 16 * t, 16)
            a(f"v_mfma_f32_32x32x16_bf16 {vr(ACC+16*t,16)}, {vr(BO+4*s,4)}, {vr(FA[e]+4*t,4)}, {c}")
    for m in range(4):
        a.wait_vm(f"a{m}")
        a("s_barrier")
        rd(2 * m)
        if m: mf(2 * m - 1)
        rd(2 * m + 1)
        if m == 0 and role == "M":
            Ls = a.newlabel("noep")
            a(f"s_add_u32 s{sT0}, s{sW}, s2\ns_cmp_lg_u32 s{sT0}, 0\ns_cbranch_scc1 {Ls}")
            a(f"v_mov_b32 v5, s{sTAG}\ns_mov_b64 exec, 1")
            a.vmem(f"buffer_store_dword v5, off, {sr(S_WS,4)}, 0 offset:{EPOCH} sc1", None, cond=True)
            a("s_mov_b64 exec, -1")
            a.label(Ls)
        mf(2 * m)
    mf(7)
    g.stamp(12)
    reduce4(g, RB3, 64, BO)
    for i in range(4): a(f"v_pk_fma_f32 {vr(X2+2*i,2)}, {vr(ACC+2*i,2)}, {vr(GA+2*i,2)}, {vr(X2+2*i,2)}")
    for i in range(4): a(f"v_pk_mul_f32 {vr(CBF+2*i,2)}, {vr(CBF+2*i,2)}, {vr(X2+2*i,2)}")
    for i in range(4): a(f"v_cvt_pk_bf16_f32 v{CBF+i}, v{CBF+2*i}, v{CBF+2*i+1}")
    a.vmem(f"buffer_store_dwordx4 {vr(CBF,4)}, v{vL16}, {sr(S_WS,4)}, s{sT1} offen sc1")
    T = GA
    a(f"v_pk_add_f32 {vr(T,2)}, {vr(X2,2)}, {vr(X2+2,2)}\nv_pk_mul_f32 {vr(T+2,2)}, {vr(X2,2)}, {vr(X2,2)}")
    a(f"v_pk_add_f32 {vr(T,2)}, {vr(T,2)}, {vr(X2+4,2)}\nv_pk_fma_f32 {vr(T+2,2)}, {vr(X2+2,2)}, {vr(X2+2,2)}, {vr(T+2,2)}")
    a(f"v_pk_add_f32 {vr(T,2)}, {vr(T,2)}, {vr(X2+6,2)}\nv_pk_fma_f32 {vr(T+2,2)}, {vr(X2+4,2)}, {vr(X2+4,2)}, {vr(T+2,2)}")
    a(f"v_add_f32 v{T}, v{T}, v{T+1}\nv_pk_fma_f32 {vr(T+2,2)}, {vr(X2+6,2)}, {vr(X2+6,2)}, {vr(T+2,2)}\nv_add_f32 v{T+1}, v{T+2}, v{T+3}")
    a(f"v_lshrrev_b32 v{T+2}, 5, v{vL}\nv_lshlrev_b32 v{T+2}, 8, v{T+2}\nv_lshl_add_u32 v{T+2}, v{vL}, 3, v{T+2}\nv_add_u32 v{T+2}, s{sT4}, v{T+2}")
    a.ds(f"ds_write_b64 v{T+2}, {vr(T,2)}")
    a.wait_lg(None)
    a("s_barrier")
    if role == "M":
        Ls = a.newlabel("nost")
        a(f"s_cmp_lg_u32 s{sW}, 0\ns_cbranch_scc1 {Ls}")
        a(f"v_lshlrev_b32 v{T+2}, 3, v{vL}\nv_add_u32 v{T+2}, {ST1}, v{T+2}")
        for i in range(8): a.ds(f"ds_read_b64 {vr(ACC+2*i,2)}, v{T+2} offset:{i*512}")
        a(f"s_lshl_b32 s{sT0}, s{sR}, 3\ns_add_u32 s{sT0}, s{sT0}, s{sJ}\ns_lshl_b32 s{sT0}, s{sT0}, 10\ns_add_u32 s{sT0}, s{sT0}, {STAT}")
        a.wait_lg(None)
        for i in range(1, 8): a(f"v_pk_add_f32 {vr(ACC,2)}, {vr(ACC,2)}, {vr(ACC+2*i,2)}")
        a(f"v_mov_b32 v{ACC+2}, v{ACC+1}\nv_mov_b32 v{ACC+1}, s{sTAG}\nv_mov_b32 v{ACC+3}, s{sTAG}")
        a.label(Ls)
    a.wait_vm(None)
    a("s_barrier")
    if role == "M":
        Ls = a.newlabel("nost2")
        a(f"s_cmp_lg_u32 s{sW}, 0\ns_cbranch_scc1 {Ls}")
        a.vmem(f"buffer_store_dwordx4 {vr(ACC,4)}, v{vL16}, {sr(S_WS,4)}, s{sT0} offen sc1", None, cond=True)
        a("s_nop 1")
        a.label(Ls)
    g.stamp(13)

def p4(g, role):
    a = g.a
    nt = 2 if role == "H" else 1
    vA, vM = 3, 4
    FR = 64
    AL, BE = 96, 100
    RC = 104
    a(f"v_lshrrev_b32 v5, 4, v{vL}\nv_lshrrev_b32 v{vA}, 5, v{vL}\nv_lshlrev_b32 v{vA}, 11, v{vA}\nv_and_b32 v5, 1, v5\nv_lshl_add_u32 v{vA}, v5, 9, v{vA}\nv_and_b32 v5, 15, v{vL}\nv_lshl_add_u32 v{vA}, v5, 4, v{vA}")
    a(f"s_lshl_b32 s{sT0}, s{sR}, 3\ns_add_u32 s{sT0}, s{sT0}, s{sW}\ns_lshl_b32 s{sT0}, s{sT0}, 10\ns_add_u32 s{sT0}, s{sT0}, {STAT}")
    a(f"s_lshl_b32 s{sT2}, s{sW}, 13\ns_lshl_b32 s{sT3}, s{sR}, 16\ns_add_u32 s{sT3}, s{sT3}, s{sT2}\ns_add_u32 s{sT3}, s{sT3}, {XIMG}\ns_mov_b32 m0, s{sT2}")
    a(f"s_lshl_b32 s{sT1}, s{sW}, 9\ns_add_u32 s{sT1}, s{sT1}, {ST2}\nv_lshlrev_b32 v{vM}, 3, v{vL}\nv_add_u32 v48, s{sT1}, v{vM}\nv_add_u32 v{vM}, {ST2}, v{vM}")
    a(f"v_lshlrev_b32 v5, 2, v5")
    a(f"s_bfe_u32 s{sT1}, s{sW}, 0x10001\ns_lshl_b32 s{sT1}, s{sT1}, 7\nv_and_b32 v49, 31, v{vL}\nv_lshlrev_b32 v49, 2, v49\nv_add_u32 v49, s{sT1}, v49")
    g.poll([f"buffer_load_dwordx4 {vr(RC,4)}, v{vL16}, {sr(S_WS,4)}, s{sT0} offen sc1"], [RC + 1, RC + 3], "st")
    g.stamp(14)
    for m in range(4):
        if m == 2: a(f"s_add_u32 m0, s{sT2}, 4096\ns_add_u32 s{sT3}, s{sT3}, 4096")
        for t in range(2):
            a.vmem(f"buffer_load_dwordx4 v{vL16}, {sr(S_WS,4)}, s{sT3} offen offset:{(m&1)*2048+t*1024} sc1 lds", f"a{m>>1}")
    a(f"v_mov_b32 v{RC+1}, v{RC+2}")
    a.ds(f"ds_write_b64 v48, {vr(RC,2)}")
    a.wait_lg(None)
    a("s_barrier")
    for i in range(8): a.ds(f"ds_read_b64 {vr(FR+2*i,2)}, v{vM} offset:{i*512}")
    a(f"v_cmp_gt_u32 vcc, 32, v5")
    a.wait_lg(None)
    for d, s in ((0, 1), (2, 3), (4, 5), (6, 7), (0, 2), (4, 6), (0, 4)):
        a(f"v_pk_add_f32 {vr(FR+2*d,2)}, {vr(FR+2*d,2)}, {vr(FR+2*s,2)}")
    a(f"v_mul_f32 v{FR}, {hex(f2u(-1/512))}, v{FR}\nv_mul_f32 v{FR+1}, {hex(f2u(1/512))}, v{FR+1}")
    a(f"v_fma_f32 v{FR+1}, -v{FR}, v{FR}, v{FR+1}\nv_max_f32 v{FR+1}, 0, v{FR+1}\nv_add_f32 v{FR+1}, {hex(f2u(1e-5))}, v{FR+1}")
    a(f"v_rsq_f32 v{FR+2}, v{FR+1}\nv_mul_f32 v{FR+1}, v{FR+1}, v{FR+2}")
    a(f"v_cndmask_b32 v{FR+3}, v{FR+1}, v{FR}, vcc\nv_cndmask_b32 v{FR+4}, v{FR}, v{FR+1}, vcc")
    for t in range(4):
        a.ds(f"ds_bpermute_b32 v{AL+t}, v5, v{FR+3} offset:{t*64}")
        a.ds(f"ds_bpermute_b32 v{BE+t}, v5, v{FR+4} offset:{t*64}")
    a.ds(f"ds_bpermute_b32 v{RSTD}, v49, v{FR+2}")
    a.wait_lg(None)
    order = P4_ORDER
    def reads(n):
        ks = order[n]; f = FR + 16 * (n & 1)
        for t in range(4): a.ds(f"ds_read_b128 {vr(f+4*t,4)}, v{vA} offset:{ks*4096+(t>>1)*1024+(t&1)*256}", f"f{n}")
    a.wait_vm("a0")
    a("s_barrier")
    g.stamp(15)
    reads(0)
    for ct in range(nt):
        for t in range(4):
            d = ACC + 16 * ct + 4 * t
            ps = AL + (t & ~1); pb = BE + (t & ~1); sel = t & 1
            for i in range(2):
                a(f"v_pk_mul_f32 {vr(d+2*i,2)}, {vr(UX+4*ct+2*i,2)}, {vr(ps,2)} op_sel:[0,{sel}] op_sel_hi:[1,{sel}]")
            for i in range(2):
                a(f"v_pk_fma_f32 {vr(d+2*i,2)}, {vr(UY+4*ct+2*i,2)}, {vr(pb,2)}, {vr(d+2*i,2)} op_sel:[0,{sel},0] op_sel_hi:[1,{sel},1]")
    if role == "H": a("s_setprio 1")
    for n in range(16):
        if n + 1 == 8:
            a.wait_vm("a1")
            a("s_barrier")
        if n + 1 < 16: reads(n + 1)
        a.wait_lg(f"f{n}")
        ks = order[n]; f = FR + 16 * (n & 1)
        for t in range(4):
            for ct in range(nt):
                d = ACC + 16 * ct + 4 * t
                a(f"v_mfma_f32_16x16x32_bf16 {vr(d,4)}, {vr(B1+64*ct+4*ks,4)}, {vr(f+4*t,4)}, {vr(d,4)}")
        if role == "H" and n < 11: ld_b2(g, role, 2 * n); ld_b2(g, role, 2 * n + 1)
        if role == "M" and n < 6: ld_b2(g, role, 16 + n)
    g.stamp(16)
    a(f"s_mul_i32 s{sT0}, s{sR}, {88*2048}\ns_lshl_b32 s{sT1}, s{sB1}, 11\ns_add_u32 s{sT0}, s{sT0}, s{sT1}\ns_add_u32 s{sT0}, s{sT0}, {HIMG}\ns_add_u32 s{sT1}, s{sT0}, 8192")
    Ls = a.newlabel("nohid")
    if role == "M": a(f"s_cmp_eq_u32 s{sW}, 3\ns_cbranch_scc1 {Ls}")
    for t32 in range(2):
        for ct in range(nt):
            d = ACC + 16 * ct + 8 * t32
            p = 48 + 8 * ct + 4 * t32
            for i in range(4): a(f"v_cvt_pk_bf16_f32 v{p+i}, v{d+2*i}, v{d+2*i+1}")
            for i in (0, 2, 1, 3): a(f"v_pk_max_i16 v{p+i}, v{p+i}, 0")
            a(f"v_permlane16_swap_b32 v{p}, v{p+2}\nv_permlane16_swap_b32 v{p+1}, v{p+3}")
            a.vmem(f"buffer_store_dwordx4 {vr(p,4)}, v{vL16}, {sr(S_WS,4)}, s{sT1 if ct else sT0} offen offset:{t32*1024} sc1", "hs", cond=(role == "M"))
    if role == "M": a.label(Ls)
    if role == "H": a("s_setprio 0")
    a.wait_vm(None)
    a("s_barrier")
    post_flag(g, role, FLAG4)
    g.stamp(17)

def p5(g, role):
    a = g.a
    vA = 56
    GB = 48; FA = (64, 72, 80, 88)
    mod_piece(g, GB, 64, MV2 + 128)
    for i in range(8): a(f"v_mul_f32 v{GB+i}, v{GB+i}, v{RSTD}")
    a(f"s_lshr_b32 s{sT1}, s{sW}, 1\ns_lshl_b32 s{sT2}, s{sT1}, 11\ns_and_b32 s{sT1}, s{sT1}, 1\ns_lshl_b32 s{sT1}, s{sT1}, 10\ns_add_u32 s{sT2}, s{sT2}, s{sT1}")
    a(f"v_add_u32 v{vA}, s{sT2}, v{vL16}\nv_xor_b32 v{vA+1}, 1024, v{vA}")
    for k in (1, 2):
        a(f"v_add_u32 v{vA+2*k}, {k*65536}, v{vA}\nv_add_u32 v{vA+2*k+1}, {k*65536}, v{vA+1}")
    a(f"s_lshl_b32 s{sT2}, s{sW}, 11\ns_mul_i32 s{sT3}, s{sR}, {88*2048}\ns_mul_i32 s{sT1}, s{sW}, {11*2048}\ns_add_u32 s{sT3}, s{sT3}, s{sT1}\ns_add_u32 s{sT3}, s{sT3}, {HIMG}")
    wait_flag(g, FLAG4, "h")
    g.stamp(18)
    def dma(m):
        a(f"s_add_u32 m0, s{sT2}, {(m % 9) * 16384}")
        if m: a(f"s_add_u32 s{sT3}, s{sT3}, 2048")
        for t in range(2):
            a.vmem(f"buffer_load_dwordx4 v{vL16}, {sr(S_WS,4)}, s{sT3} offen offset:{t*1024} sc1 lds", f"a{m}")
    for m in range(9): dma(m)
    def rd(m, e):
        f = FA[2 * (m & 1) + e]
        off = (m % 9) * 16384 + e * 8192
        k = off >> 16; off &= 65535
        a.ds(f"ds_read_b128 {vr(f,4)}, v{vA+2*k} offset:{off}", f"f{m}")
        a.ds(f"ds_read_b128 {vr(f+4,4)}, v{vA+2*k+1} offset:{off}", f"f{m}")
    def mf(m, e, t):
        f = FA[2 * (m & 1) + e]
        c = "0" if (m == 0 and e == 0) else vr(ACC + 16 * t, 16)
        a(f"v_mfma_f32_32x32x16_bf16 {vr(ACC+16*t,16)}, {vr(b2reg(role,2*m+e),4)}, {vr(f+4*t,4)}, {c}")
    for m in range(12):
        if m < 11:
            a.wait_vm(f"a{m}")
            a("s_barrier")
        if m:
            a.wait_lg(f"f{m-1}")
            mf(m - 1, 0, 0)
        if m < 11: rd(m, 0)
        if m: mf(m - 1, 0, 1)
        if m < 11: rd(m, 1)
        if m: mf(m - 1, 1, 0)
        if m in (2, 3): dma(m + 7)
        if m: mf(m - 1, 1, 1)
    g.stamp(19)
    reduce4(g, RB5, 96, 64)
    for i in range(4): a(f"v_pk_fma_f32 {vr(X2+2*i,2)}, {vr(ACC+2*i,2)}, {vr(GB+2*i,2)}, {vr(X2+2*i,2)}")
    for i in range(4): a(f"v_cvt_pk_bf16_f32 v{X2+i}, v{X2+2*i}, v{X2+2*i+1}")
    a.vmem(f"buffer_store_dwordx4 {vr(X2,4)}, v{vXoff}, {sr(S_OUT,4)}, s{sXO} offen")
    g.stamp(20)
```

```python
import sys, math
from dsl import *

KNAME = "adaLN_cond__softmax_full_mha__dense_activation_relu__prompt_kernel"

EPOCH  = 0
FLAG2  = 0x8000
FLAG4  = 0x10000
FLAG1B = 0x18000
FLAG1  = 0x20000
STAT   = 0x40000
WOI    = 0x80000
KV     = 0x100000
OIMG   = 0x500000
XIMG   = 0x700000
HIMG   = 0x900000
W1I    = 0xE80000
W2I    = 0xFE0000
MODP   = 0x1140000
WSEND  = 0x1158000
LOG    = 0x1200000
WSSIZE = 0x1400000

WRING = 65536
SLOT  = 24576
QX    = WRING + SLOT
CB    = WRING + 2 * SLOT
RB3   = 65536
RB5   = 32768
MV    = 147456
ST1   = MV + 2048
ST2   = ST1 + 4096
MV2   = ST2 + 4096
LDSSZ = 163840

S_WS, S_X, S_WQ, S_WM, S_C, S_RL, S_OUT = 4, 8, 12, 16, 20, 24, 28
S_PWO, S_PW1, S_PW2 = 32, 36, 38
sW, sXCD, sI, sR, sJ, sTAG = 40, 41, 42, 43, 44, 45
sT0, sT1, sT2, sT3, sT4, sT5, sCNT = 46, 47, 48, 49, 50, 51, 52
sVM = 54
sKVB, sKVO = 56, 57
sB1, sB1b = 58, 59
sU0, sU1, sU2, sU3 = 60, 61, 62, 63
sLN = 64
sST = 96
sPM = 98
POLL_LIMIT = 400000

LOG2E = 1.4426950408889634
def f2u(x):
    import struct
    return struct.unpack("<I", struct.pack("<f", x))[0]

class Gen:
    def __init__(self, stamps=False, stop_after=None, force_slow=False, opts=None):
        self.opts = opts or {}
        self.early_w = int(self.opts.get("early_w", 2))
        self.prefetch = int(self.opts.get("prefetch", 1))
        self.a = Asm()
        self.stamps = stamps
        self.stop_after = stop_after
        self.force_slow = force_slow
        self.nstamp = 0

    def stamp(self, idx):
        if not self.stamps: return
        a = self.a
        a(f"s_memtime {sr(sST,2)}")
        a("s_waitcnt lgkmcnt(0)"); a.lg = []
        a(f"v_writelane_b32 v{self.vstamp}, s{sST}, {idx}")

    def flush_stamps(self):
        if not self.stamps: return
        a = self.a
        a(f"s_lshl_b32 s{sT0}, s2, 3\ns_add_u32 s{sT0}, s{sT0}, s{sW}\ns_lshl_b32 s{sT0}, s{sT0}, 8\ns_add_u32 s{sT0}, s{sT0}, {LOG}")
        a(f"v_lshlrev_b32 v4, 2, v0")
        a.vmem(f"buffer_store_dword v{self.vstamp}, v4, {sr(S_WS,4)}, s{sT0} offen")

    def poll(self, loads, cmps, name):
        a = self.a
        L = a.newlabel("poll_" + name); Ld = a.newlabel("pdone_" + name)
        a(f"s_mov_b32 s{sCNT}, {POLL_LIMIT}")
        a.label(L)
        for ld in loads: a(ld)
        a(f"s_sub_u32 s{sCNT}, s{sCNT}, 1\ns_cmp_eq_u32 s{sCNT}, 0")
        a("s_waitcnt vmcnt(0)"); a.vm = []
        a(f"s_cbranch_scc1 {Ld}")
        for n, v in enumerate(cmps):
            if n == 0: a(f"v_cmp_ne_u32 vcc, s{sTAG}, v{v}")
            else:
                a(f"v_cmp_ne_u32 {sr(sPM,2)}, v{v}, s{sTAG}")
                a(f"s_or_b64 vcc, vcc, {sr(sPM,2)}")
        a("s_nop 0")
        a(f"s_cbranch_vccnz {L}")
        a.label(Ld)

    def unpack(self, dst, src, n):
        a = self.a
        for i in range(n):
            a(f"v_and_b32 v{dst+2*i+1}, 0xffff0000, v{src+i}")
            a(f"v_lshlrev_b32 v{dst+2*i}, 16, v{src+i}")

    def swap23(self, dst, src, tmp):
        a = self.a
        a(f"v_and_b32 v{tmp}, 4, v{src}\nv_lshlrev_b32 v{tmp}, 1, v{tmp}")
        a(f"v_and_b32 v{dst}, 0xfffffff3, v{src}") if dst != src else None
        assert dst != src
        a(f"v_or_b32 v{dst}, v{dst}, v{tmp}")
        a(f"v_and_b32 v{tmp}, 8, v{src}\nv_lshrrev_b32 v{tmp}, 1, v{tmp}\nv_or_b32 v{dst}, v{dst}, v{tmp}")

    def gemv_issue(self, base, s_lc, s_dst):
        a = self.a
        vC, vWm, vOff = base, base + 4, base + 36
        a(f"s_lshl_b32 s{s_dst}, s{s_lc}, 8\ns_mul_i32 s{sT0}, s{sXCD}, 12288\ns_add_u32 s{s_dst}, s{s_dst}, s{sT0}\ns_add_u32 s{s_dst}, s{s_dst}, {MODP}")
        a(f"s_lshl_b32 s{s_lc}, s{s_lc}, 7\ns_mul_i32 s{sT0}, s{sXCD}, {64*6144}\ns_add_u32 s{s_lc}, s{s_lc}, s{sT0}\ns_lshl_b32 s{sT0}, s{sXCD}, 7")
        a(f"v_lshrrev_b32 v{vOff+1}, 3, v0\nv_mul_u32_u24 v{vOff}, 49152, v{vOff+1}\nv_lshlrev_b32 v{vOff+1}, 4, v{vOff+1}")
        a(f"v_and_b32 v{vOff+2}, 7, v0\nv_lshl_add_u32 v{vOff}, v{vOff+2}, 4, v{vOff}")
        a.vmem(f"buffer_load_dwordx4 {vr(vC,4)}, v{vOff+1}, {sr(S_C,4)}, s{sT0} offen", "gc")
        for n in range(8):
            a.vmem(f"buffer_load_dwordx4 {vr(vWm+4*n,4)}, v{vOff}, {sr(S_WM,4)}, s{s_lc} offen", f"gw{n}")
            if n < 7: a(f"s_add_u32 s{s_lc}, s{s_lc}, 6144")
    def gemv_finish(self, base, s_dst):
        a = self.a
        vC, vWm, vOff = base, base + 4, base + 36
        vS, vT, vAcc = base + 40, base + 48, base + 56
        a(f"v_lshrrev_b32 v{vOff+1}, 4, v0\nv_lshlrev_b32 v{vOff+1}, 3, v{vOff+1}\nv_lshl_add_u32 v{vOff+1}, v{vOff+2}, 5, v{vOff+1}")
        a.wait_vm("gc")
        self.unpack(vS, vC, 4)
        for i in range(8): a(f"v_mul_f32 v{vT+i}, {hex(f2u(-LOG2E))}, v{vS+i}")
        for i in range(8): a(f"v_exp_f32 v{vT+i}, v{vT+i}")
        for i in range(8): a(f"v_add_f32 v{vT+i}, 1.0, v{vT+i}")
        for i in range(8): a(f"v_rcp_f32 v{vT+i}, v{vT+i}")
        for i in range(8): a(f"v_mul_f32 v{vS+i}, v{vS+i}, v{vT+i}")
        for i in range(4): a(f"v_cvt_pk_bf16_f32 v{vC+i}, v{vS+2*i}, v{vS+2*i+1}")
        self.unpack(vS, vC, 4)
        for n in range(8):
            a.wait_vm(f"gw{n}")
            self.unpack(vT, vWm + 4 * n, 4)
            sp = vS + (n & ~1); sel = n & 1
            for i in range(4):
                if n == 0:
                    a(f"v_pk_mul_f32 {vr(vAcc+2*i,2)}, {vr(vT+2*i,2)}, {vr(sp,2)} op_sel:[0,{sel}] op_sel_hi:[1,{sel}]")
                else:
                    a(f"v_pk_fma_f32 {vr(vAcc+2*i,2)}, {vr(vT+2*i,2)}, {vr(sp,2)}, {vr(vAcc+2*i,2)} op_sel:[0,{sel},0] op_sel_hi:[1,{sel},1]")
        for i in range(4): a(f"v_permlane32_swap_b32 v{vAcc+i}, v{vAcc+i+4}")
        for i in range(4): a(f"v_add_f32 v{vAcc+i}, v{vAcc+i}, v{vAcc+i+4}")
        for i in range(2): a(f"v_permlane16_swap_b32 v{vAcc+i}, v{vAcc+i+2}")
        for i in range(2): a(f"v_add_f32 v{vAcc+i}, v{vAcc+i}, v{vAcc+i+2}")
        a(f"v_mov_b32 v{vAcc+2}, 0xff")
        for i in range(2): a(f"v_add_f32_dpp v{vAcc+i}, v{vAcc+i}, v{vAcc+i} row_ror:8 row_mask:0xf bank_mask:0xf")
        a(f"v_bfi_b32 v{vAcc+1}, v{vAcc+2}, s{sTAG}, v{vAcc+1}")
        a(f"s_mov_b32 exec_lo, 0xff00ff\ns_mov_b32 exec_hi, 0xff00ff")
        a.vmem(f"buffer_store_dwordx2 {vr(vAcc,2)}, v{vOff+1}, {sr(S_WS,4)}, s{s_dst} offen sc1", "mst")
        a("s_mov_b64 exec, -1")

    def gather(self, base, vOff, s_base, s_add, name):
        a = self.a
        L = a.newlabel("g_" + name); Ld = a.newlabel("gd_" + name)
        a(f"s_mov_b32 s{sCNT}, {POLL_LIMIT}\ns_and_b32 s{sT4}, s{sTAG}, 0xff")
        a.label(L)
        a.vm = []
        a(f"s_mov_b32 s{sT0}, s{s_base}")
        for p in range(8):
            a.vmem(f"buffer_load_dwordx4 {vr(base+4*p,4)}, v{vOff}, {sr(S_WS,4)}, s{sT0} offen sc1", f"p{p}")
            if p < 7: a(f"s_add_u32 s{sT0}, s{sT0}, 12288")
        chk = base + 32
        for p in range(8):
            a.wait_vm(f"p{p}")
            r = base + 4 * p
            a(f"v_xor_b32 v{r+1}, s{sT4}, v{r+1}\nv_xor_b32 v{r+3}, s{sT4}, v{r+3}")
            if p == 0: a(f"v_or_b32 v{chk}, v{r+1}, v{r+3}")
            else:
                a(f"v_or3_b32 v{chk}, v{chk}, v{r+1}, v{r+3}")
                a(f"v_pk_add_f32 {vr(base,2)}, {vr(base,2)}, {vr(r,2)}\nv_pk_add_f32 {vr(base+2,2)}, {vr(base+2,2)}, {vr(r+2,2)}")
        a(f"v_and_b32 v{chk}, 0xff, v{chk}\nv_cmp_ne_u32 vcc, 0, v{chk}")
        a(f"s_sub_u32 s{sCNT}, s{sCNT}, 1\ns_cmp_eq_u32 s{sCNT}, 0\ns_cbranch_scc1 {Ld}")
        a(f"s_cbranch_vccnz {L}")
        a.label(Ld)
        a(f"v_cvt_pk_bf16_f32 v{base+4}, v{base}, v{base+1}\nv_cvt_pk_bf16_f32 v{base+5}, v{base+2}, v{base+3}")
        if s_add is not None:
            self.unpack(base, base + 4, 2)
            for i in range(4): a(f"v_add_f32 v{base+i}, s{s_add}, v{base+i}")
            a(f"v_cvt_pk_bf16_f32 v{base+4}, v{base}, v{base+1}\nv_cvt_pk_bf16_f32 v{base+5}, v{base+2}, v{base+3}")

    def wdma_kind(self, vOff, n, tag):
        a = self.a
        a(f"s_add_u32 s{sT0}, s{sXCD}, {n}\ns_and_b32 s{sT0}, s{sT0}, 7\ns_mul_i32 s{sT0}, s{sT0}, {64*3072}")
        a(f"s_add_u32 s{sT0}, s{sT0}, s{sU0}")
        for o in range(8):
            a(f"s_add_u32 m0, s{sU1}, {WRING + (n & 3) * SLOT + o * 3072}")
            if o: a(f"s_add_u32 s{sT0}, s{sT0}, {8*3072}")
            a.vmem(f"buffer_load_dwordx4 v{vOff}, {sr(S_WQ,4)}, s{sT0} offen lds", tag)

    def wdma(self, vOff, n, tag):
        a = self.a
        a(f"s_add_u32 s{sT0}, s{sXCD}, {n}\ns_and_b32 s{sT0}, s{sT0}, 7\ns_mul_i32 s{sT0}, s{sT0}, {64*3072}")
        a(f"s_add_u32 s{sT0}, s{sT0}, s{sU0}")
        for o in range(2):
            a(f"s_add_u32 m0, s{sU1}, {WRING + (n & 3) * SLOT + o * 3072}")
            if o: a(f"s_add_u32 s{sT0}, s{sT0}, {8*3072}")
            for kind in range(3):
                a.vmem(f"buffer_load_dwordx4 v{vOff}, {sr(S_WQ,4)}, s{sT0} offen offset:{kind*1024} lds", tag)

    def dma_lane_off(self, dst, vL, t0, t1, pitch):
        a = self.a
        a(f"v_lshrrev_b32 v{t0}, 5, v{vL}\nv_bfe_u32 v{t1}, v{vL}, 2, 2\nv_lshl_add_u32 v{t0}, v{t0}, 2, v{t1}")
        a(f"v_mul_u32_u24 v{dst}, {pitch}, v{t0}")
        a(f"v_bfe_u32 v{t0}, v{vL}, 4, 1\nv_lshl_add_u32 v{dst}, v{t0}, 6, v{dst}")
        a(f"v_and_b32 v{t0}, 3, v{vL}\nv_lshl_add_u32 v{dst}, v{t0}, 4, v{dst}")

    def prologue(self):
        a = self.a
        a(f"s_cmp_ge_u32 s2, 256\ns_cbranch_scc1 L_exit")
        a(f"""s_load_dwordx2 {sr(S_WM,2)}, s[0:1], 56
s_load_dwordx2 {sr(S_C,2)}, s[0:1], 48
s_load_dwordx2 {sr(S_WS,2)}, s[0:1], 80
s_load_dwordx2 {sr(S_X,2)}, s[0:1], 0
s_load_dwordx2 {sr(S_WQ,2)}, s[0:1], 8
s_load_dwordx2 {sr(S_OUT,2)}, s[0:1], 64
s_load_dwordx2 {sr(S_PWO,2)}, s[0:1], 16
s_load_dwordx4 {sr(S_PW1,4)}, s[0:1], 32""")
        a(f"v_lshrrev_b32 v1, 6, v0\nv_and_b32 v0, 63, v0\nv_readfirstlane_b32 s{sW}, v1\nv_lshlrev_b32 v2, 4, v0")
        for s, n in ((S_WS, WSSIZE if self.stamps else WSEND), (S_X, 2097152), (S_WQ, 1572864), (S_WM, 3145728), (S_C, 1024), (S_OUT, 2097152)):
            a(f"s_mov_b32 s{s+2}, {n}\ns_mov_b32 s{s+3}, 0x20000")
        a(f"""s_and_b32 s{sXCD}, s2, 7
s_lshr_b32 s{sI}, s2, 3
s_lshr_b32 s{sT0}, s{sI}, 3
s_lshl_b32 s{sR}, s{sXCD}, 2
s_add_u32 s{sR}, s{sR}, s{sT0}
s_and_b32 s{sJ}, s{sI}, 7
s_mov_b32 s{sVM}, 0xffff
s_mov_b32 s{sVM+1}, 0xffff
s_and_b32 s{sT0}, s{sW}, 3
s_mul_i32 s{sU0}, s{sT0}, {16*3072}
s_lshl_b32 s{sT1}, s{sJ}, 7
s_add_u32 s{sU0}, s{sU0}, s{sT1}
s_mul_i32 s{sU1}, s{sT0}, 6144""")
        self.dma_lane_off(3, 0, 4, 5, 3072)
        a("s_waitcnt lgkmcnt(0)")
        a(f"s_load_dword s{sTAG}, {sr(S_WS,2)}, {EPOCH}")
        a(f"s_cmp_ge_u32 s{sW}, 4\ns_cbranch_scc1 L_H")

    def get_tag(self):
        self.a("s_waitcnt lgkmcnt(0)"); self.a.lg = []
        self.a(f"s_add_u32 s{sTAG}, s{sTAG}, 0x9e3779b9")

    def p1_M(self):
        a = self.a
        vL, vL16, vWoff = 0, 2, 3
        G = 128
        Lno = a.newlabel("nomod1")
        a(f"s_lshl_b32 s{sT0}, s{sW}, 5\ns_add_u32 s{sU2}, s{sT0}, s{sI}\ns_cmp_ge_u32 s{sU2}, 16\ns_cbranch_scc1 {Lno}")
        st = a.save()
        self.gemv_issue(G, sU2, sU3)
        self.wdma(vWoff, 0, "w0")
        self.get_tag()
        self.gemv_finish(G, sU3)
        a.wait_vm("w0")
        Lj = a.newlabel("join1")
        a(f"s_branch {Lj}")
        a.label(Lno)
        a.restore(st)
        self.wdma(vWoff, 0, "w0")
        self.code_prefetch(G)
        self.get_tag()
        a.wait_vm("w0")
        a.label(Lj)
        a.vm = []
        self.stamp(1)
        for n in range(1, 1 + self.early_w): self.wdma(vWoff, n, f"w{n}")
        a(f"s_lshl_b32 s{sT1}, s{sW}, 10\ns_add_u32 s{sT2}, s{sT1}, {MODP}\ns_cmp_ge_u32 s{sW}, 2\ns_cselect_b32 s{sT3}, 1.0, 0")
        a(f"v_add_u32 v4, s{sT1}, v{vL16}")
        self.gather(G, vL16, sT2, sT3, "m1")
        self.unpack(G, G + 4, 2)
        for k in range(4): a.ds(f"ds_write_b128 v4, {vr(G,4)} offset:{k*16384}")
        for n in range(1 + self.early_w, 4): self.wdma(vWoff, n, f"w{n}")
        a.wait_lg(None)
        a("s_barrier")
        self.stamp(5)
        vA, vAc, vW0, vW1, vKst, vVst, vQ = 8, 12, 16, 17, 18, 19, 20
        t0, t1, t2 = 4, 5, 6
        a(f"s_and_b32 s{sT1}, s{sW}, 1\ns_lshr_b32 s{sT2}, s{sW}, 1")
        a(f"v_and_b32 v{t0}, 31, v{vL}\nv_lshlrev_b32 v{t0}, 10, v{t0}\ns_lshl_b32 s{sT3}, s{sT1}, 15\nv_add_u32 v{t0}, s{sT3}, v{t0}")
        a(f"v_lshrrev_b32 v{t1}, 5, v{vL}\nv_and_b32 v{t2}, 15, v{vL}\nv_xor_b32 v{t2}, v{t2}, v{t1}\nv_lshl_add_u32 v{vA}, v{t2}, 4, v{t0}")
        for k in range(1, 4): a(f"v_xor_b32 v{vA+k}, {k << 5}, v{vA}")
        a(f"v_mul_u32_u24 v{vW0}, 3072, v{t1}\nv_bfe_u32 v{t0}, v{vL}, 2, 2\nv_lshl_add_u32 v{vW0}, v{t0}, 6, v{vW0}")
        a(f"v_bfe_u32 v{t0}, v{vL}, 4, 1\nv_lshl_add_u32 v{vW0}, v{t0}, 5, v{vW0}\nv_and_b32 v{t0}, 3, v{vL}\nv_lshl_add_u32 v{vW0}, v{t0}, 3, v{vW0}")
        a(f"s_lshl_b32 s{sT3}, s{sT2}, 8\ns_add_u32 s{sT3}, s{sT3}, {WRING}\nv_add_u32 v{vW0}, s{sT3}, v{vW0}\nv_add_u32 v{vW1}, {2*SLOT}, v{vW0}")
        self.swap23(t0, vL, t2)
        a(f"v_lshlrev_b32 v{vKst}, 4, v{t0}")
        a(f"v_and_b32 v{t0}, 15, v{t0}\nv_lshlrev_b32 v{t0}, 4, v{t0}\nv_lshl_add_u32 v{t0}, v{t1}, 8, v{t0}")
        a(f"v_bfe_u32 v{t2}, v{vL}, 4, 1\nv_lshl_add_u32 v{vVst}, v{t2}, 17, v{t0}")
        a(f"s_lshl_b32 s{sT3}, s{sT2}, 12\ns_lshl_b32 s{sT4}, s{sT1}, 10\ns_add_u32 s{sT3}, s{sT3}, s{sT4}\ns_add_u32 s{sT3}, s{sT3}, {QX}\nv_add_u32 v{vQ}, s{sT3}, v{vL16}")
        a(f"""s_lshl_b32 s{sU2}, s{sJ}, 1
s_add_u32 s{sU2}, s{sU2}, s{sT2}
s_lshl_b32 s{sU2}, s{sU2}, 18
s_lshl_b32 s{sT3}, s{sR}, 1
s_add_u32 s{sT3}, s{sT3}, s{sT1}
s_lshl_b32 s{sT3}, s{sT3}, 11
s_add_u32 s{sU2}, s{sU2}, s{sT3}
s_add_u32 s{sU2}, s{sU2}, {KV}
s_add_u32 s{sU3}, s{sU2}, 131072""")
        ACC = 32
        FR = 80
        NSET = 3
        def reads(step, lo=0, hi=7):
            n, ks = step >> 2, step & 3
            f = FR + 16 * (step % NSET)
            if lo == 0:
                if ks == 0:
                    a(f"s_add_u32 s{sT0}, s{sXCD}, {n}\ns_and_b32 s{sT0}, s{sT0}, 7\ns_lshl_b32 s{sT0}, s{sT0}, 7")
                a(f"v_xor_b32 v{vAc}, s{sT0}, v{vA+ks}")
            vb = vW0 if (n & 3) < 2 else vW1
            for i in range(lo, hi):
                if i == 2:
                    a.ds(f"ds_read_b128 {vr(f,4)}, v{vAc}", f"f{step}")
                else:
                    kind, kq = divmod(i if i < 2 else i - 1, 2)
                    off = (n & 1) * SLOT + ks * 6144 + kind * 1024 + kq * 512
                    a.ds(f"ds_read_b64_tr_b16 {vr(f+4+4*kind+2*kq,2)}, v{vb} offset:{off}", f"f{step}")
        def mfmas(step, lo, hi):
            f = FR + 16 * (step % NSET)
            for kind in range(lo, hi):
                c = "0" if step == 0 else vr(ACC + 16 * kind, 16)
                A, B = (vr(f + 4 + 4 * kind, 4), vr(f, 4)) if kind < 2 else (vr(f, 4), vr(f + 4 + 4 * kind, 4))
                a(f"v_mfma_f32_32x32x16_bf16 {vr(ACC+16*kind,16)}, {A}, {B}, {c}")
        a("s_barrier")
        self.stamp(2)
        reads(0); reads(1)
        for step in range(32):
            nxt = step + 2
            if nxt < 32 and (nxt & 3) == 0:
                a.wait_lg(None)
                if (nxt >> 2) <= 3: a.wait_vm(f"w{nxt >> 2}")
                mfmas(step, 0, 1)
                a("s_barrier")
            else:
                a.wait_lg(f"f{step}")
                mfmas(step, 0, 1)
            if nxt < 32: reads(nxt, 0, 3)
            mfmas(step, 1, 2)
            if nxt < 32: reads(nxt, 3, 5)
            mfmas(step, 2, 3)
            if nxt < 32: reads(nxt, 5, 7)
        self.stamp(3)
        PK = 80
        for i in range(8): a(f"v_cvt_pk_bf16_f32 v{PK+i}, v{ACC+16+2*i}, v{ACC+17+2*i}")
        a.vmem(f"buffer_store_dwordx4 {vr(PK,4)}, v{vKst}, {sr(S_WS,4)}, s{sU2} offen sc1", "kv")
        a.vmem(f"buffer_store_dwordx4 {vr(PK+4,4)}, v{vKst}, {sr(S_WS,4)}, s{sU3} offen sc1", "kv")
        for i in range(8): a(f"v_cvt_pk_bf16_f32 v{PK+8+i}, v{ACC+32+2*i}, v{ACC+33+2*i}")
        a.vmem(f"buffer_store_dwordx4 {vr(PK+8,4)}, v{vVst}, {sr(S_WS,4)}, s{sU2} offen offset:1024 sc1", "kv")
        a.vmem(f"buffer_store_dwordx4 {vr(PK+12,4)}, v{vVst}, {sr(S_WS,4)}, s{sU2} offen offset:1536 sc1", "kv")
        a(f"s_mov_b32 s{sT0}, {hex(f2u(0.25*LOG2E))}")
        for i in range(16): a(f"v_mul_f32 v{ACC+i}, s{sT0}, v{ACC+i}")
        for i in range(8): a(f"v_cvt_pk_bf16_f32 v{PK+16+i}, v{ACC+2*i}, v{ACC+1+2*i}")
        a.ds(f"ds_write_b128 v{vQ}, {vr(PK+16,4)}")
        a.ds(f"ds_write_b128 v{vQ}, {vr(PK+20,4)} offset:2048")
        a.wait_lg(None)
        a("s_barrier")
        a(f"s_lshl_b32 s{sT0}, s{sJ}, 2\ns_add_u32 s{sT0}, s{sT0}, s{sW}\ns_lshl_b32 s{sT0}, s{sT0}, 5\ns_add_u32 s{sT0}, s{sT0}, s{sR}\ns_lshl_b32 s{sT0}, s{sT0}, 7\ns_add_u32 s{sT0}, s{sT0}, {FLAG1}")
        a(f"v_mov_b32 v4, s{sTAG}")
        a.wait_vm(None)
        a("s_mov_b64 exec, 1")
        a.vmem(f"buffer_store_dword v4, off, {sr(S_WS,4)}, s{sT0} sc1")
        a("s_mov_b64 exec, -1")
        self.stamp(4)
        Ls = a.newlabel("nogg")
        a(f"s_cmp_lg_u32 s{sW}, 3\ns_cbranch_scc1 {Ls}")
        a(f"v_bfe_u32 v4, v{vL}, 4, 1\nv_mul_u32_u24 v4, 6144, v4\nv_and_b32 v5, 15, v{vL}\nv_lshl_add_u32 v4, v5, 4, v4")
        a(f"s_lshl_b32 s{sT2}, s{sJ}, 8\ns_add_u32 s{sT2}, s{sT2}, {MODP + 4096}")
        self.gather(G, 4, sT2, None, "gg")
        a(f"v_and_b32 v5, 31, v{vL}\nv_lshlrev_b32 v5, 3, v5\nv_add_u32 v5, {MV2}, v5")
        a.ds(f"ds_write_b64 v5, {vr(G+4,2)}")
        a.wait_lg(None)
        a.label(Ls)
        a.vm = []

    def code_prefetch(self, tmp):
        if not self.prefetch: return
        a = self.a
        Ls = a.newlabel("nopf"); Lh = a.newlabel("here")
        a(f"s_cmp_lg_u32 s{sW}, 0\ns_cbranch_scc1 {Ls}")
        a(f"s_getpc_b64 {sr(S_RL,2)}")
        a.label(Lh)
        a(f"s_sub_u32 s{S_RL}, s{S_RL}, {Lh}-{KNAME}\ns_subb_u32 s{S_RL+1}, s{S_RL+1}, 0")
        a(f"s_mov_b32 s{S_RL+2}, L_code_end-{KNAME}\ns_mov_b32 s{S_RL+3}, 0x20000")
        a(f"s_sub_u32 s{sT0}, s{sI}, 16\ns_lshl_b32 s{sT0}, s{sT0}, 12\nv_lshlrev_b32 v{tmp}, 6, v0")
        a.vmem(f"buffer_load_dword v{tmp+1}, v{tmp}, {sr(S_RL,4)}, s{sT0} offen", None, cond=True)
        a.label(Ls)

    def p1_H(self):
        a = self.a
        vL, vL16, vWoff = 0, 2, 3
        F = 128
        X = 64
        a(f"s_sub_u32 s{sT5}, s{sW}, 4\ns_lshl_b32 s{sT0}, s{sR}, 16\ns_lshl_b32 s{sT1}, s{sT5}, 14\ns_add_u32 s{sT0}, s{sT0}, s{sT1}")
        for rr in range(16):
            a.vmem(f"buffer_load_dwordx4 {vr(X+4*rr,4)}, v{vL16}, {sr(S_X,4)}, s{sT0} offen offset:{(rr&3)*1024}", f"x{rr}")
            if (rr & 3) == 3 and rr < 15: a(f"s_add_u32 s{sT0}, s{sT0}, 4096")
        vHA = 48
        a(f"v_add_u32 v{vHA}, s{sT1}, v{vL16}")
        for rr in range(1, 16): a(f"v_xor_b32 v{vHA+rr}, {rr << 4}, v{vHA}")
        self.get_tag()
        Sv, Qv, T = 16, 32, 4
        for rr in range(16):
            a.wait_vm(f"x{rr}")
            f = F + 8 * rr
            self.unpack(f, X + 4 * rr, 4)
            a(f"v_pk_add_f32 {vr(T,2)}, {vr(f,2)}, {vr(f+2,2)}")
            a(f"v_pk_mul_f32 {vr(T+2,2)}, {vr(f,2)}, {vr(f,2)}")
            a(f"v_pk_add_f32 {vr(T,2)}, {vr(T,2)}, {vr(f+4,2)}")
            a(f"v_pk_fma_f32 {vr(T+2,2)}, {vr(f+2,2)}, {vr(f+2,2)}, {vr(T+2,2)}")
            a(f"v_pk_add_f32 {vr(T,2)}, {vr(T,2)}, {vr(f+6,2)}")
            a(f"v_pk_fma_f32 {vr(T+2,2)}, {vr(f+4,2)}, {vr(f+4,2)}, {vr(T+2,2)}")
            a(f"v_add_f32 v{Sv+rr}, v{T}, v{T+1}")
            a(f"v_pk_fma_f32 {vr(T+2,2)}, {vr(f+6,2)}, {vr(f+6,2)}, {vr(T+2,2)}")
            a(f"v_add_f32 v{Qv+rr}, v{T+2}, v{T+3}")
        self.stamp(1)
        G7 = 64
        Lg = a.newlabel("nog2")
        a(f"s_cmp_lg_u32 s{sW}, 7\ns_cbranch_scc1 {Lg}")
        a(f"s_add_u32 s{sU2}, s{sI}, 16")
        self.gemv_issue(G7, sU2, sU3)
        st7 = a.save()
        a.label(Lg)
        a(f"v_lshlrev_b32 v4, 1, v{vL16}\nv_add_u32 v4, s{sT1}, v4")
        for rr in range(16): a(f"v_permlane32_swap_b32 v{Sv+rr}, v{Qv+rr}")
        for rr in range(16): a(f"v_add_f32 v{Sv+rr}, v{Sv+rr}, v{Qv+rr}")
        for i in range(8): a(f"v_permlane16_swap_b32 v{Sv+i}, v{Sv+i+8}")
        for i in range(8): a(f"v_add_f32 v{Sv+i}, v{Sv+i}, v{Sv+i+8}")
        for i in range(4):
            a(f"v_add_f32_dpp v{Qv+i}, v{Sv+i}, v{Sv+i} row_ror:8 row_mask:0xf bank_mask:0x3")
            a(f"v_add_f32_dpp v{Qv+i}, v{Sv+i+4}, v{Sv+i+4} row_ror:8 row_mask:0xf bank_mask:0xc")
        for i in range(2):
            a(f"v_add_f32_dpp v{Sv+i}, v{Qv+i}, v{Qv+i} row_half_mirror row_mask:0xf bank_mask:0x5")
            a(f"v_add_f32_dpp v{Sv+i}, v{Qv+i+2}, v{Qv+i+2} row_half_mirror row_mask:0xf bank_mask:0xa")
        for qp in ("[1,0,3,2]", "[2,3,0,1]"):
            for i in range(2): a(f"v_add_f32_dpp v{Sv+i}, v{Sv+i}, v{Sv+i} quad_perm:{qp} row_mask:0xf bank_mask:0xf")
        a(f"v_permlane32_swap_b32 v{Sv}, v{Sv+1}")
        a(f"v_mul_f32 v{Sv}, {hex(f2u(1/512))}, v{Sv}\nv_mul_f32 v{Sv+1}, {hex(f2u(1/512))}, v{Sv+1}")
        a(f"v_fma_f32 v{Sv+1}, -v{Sv}, v{Sv}, v{Sv+1}\nv_max_f32 v{Sv+1}, 0, v{Sv+1}\nv_add_f32 v{Sv+1}, {hex(f2u(1e-5))}, v{Sv+1}")
        a(f"v_rsq_f32 v{Sv+1}, v{Sv+1}\nv_mul_f32 v{Sv}, v{Sv}, v{Sv+1}\nv_sub_f32 v{Sv}, 0, v{Sv}")
        for rr in range(16):
            ln = 32 * (rr & 1) + 16 * (rr >> 3) + 8 * ((rr >> 2) & 1) + 4 * ((rr >> 1) & 1)
            a(f"v_readlane_b32 s{sLN+2*rr}, v{Sv+1}, {ln}\nv_readlane_b32 s{sLN+2*rr+1}, v{Sv}, {ln}")
        for rr in range(16):
            for i in range(4):
                f = F + 8 * rr + 2 * i
                a(f"v_pk_fma_f32 {vr(f,2)}, {vr(f,2)}, {sr(sLN+2*rr,2)}, {sr(sLN+2*rr,2)} op_sel:[0,0,1] op_sel_hi:[1,0,1]")
        self.stamp(2)
        a("s_barrier")
        self.stamp(3)
        SA, CA = 16, 24
        a.ds(f"ds_read_b128 {vr(SA,4)}, v4");  a.ds(f"ds_read_b128 {vr(SA+4,4)}, v4 offset:16")
        a.ds(f"ds_read_b128 {vr(CA,4)}, v4 offset:2048");  a.ds(f"ds_read_b128 {vr(CA+4,4)}, v4 offset:2064")
        a.wait_lg(None)
        for rr in range(16):
            f = F + 8 * rr
            for i in range(4): a(f"v_pk_fma_f32 {vr(f+2*i,2)}, {vr(f+2*i,2)}, {vr(CA+2*i,2)}, {vr(SA+2*i,2)}")
            for i in range(4): a(f"v_cvt_pk_bf16_f32 v{f+i}, v{f+2*i}, v{f+2*i+1}")
            a.ds(f"ds_write_b128 v{vHA+rr}, {vr(f,4)} offset:{rr*1024}")
        a.wait_lg(None)
        a("s_barrier")
        self.stamp(4)
        sU, sP, sDst, sSA, sSB, sDA, sDB, sSrc, sNF = [sLN + k for k in range(9)]
        Lb, Lj = a.newlabel("rl_w1"), a.newlabel("rl_j")
        vRo, vRa = 8, 12
        t0, t1, t2 = 4, 5, 6
        a(f"s_lshl_b32 s{sU}, s{sT5}, 5\ns_add_u32 s{sU}, s{sU}, s{sR}\ns_mov_b32 s{S_RL+3}, 0x20000")
        a(f"s_lshl_b32 s{sU1}, s{sT5}, 10\ns_lshl_b32 s{sU0}, s{sJ}, 7\ns_add_u32 s{sU0}, s{sU0}, s{sU1}")
        a(f"s_cmp_ge_u32 s{sU}, 60\ns_cbranch_scc1 {Lb}")
        a(f"""s_cmp_ge_u32 s{sU}, 16
s_cselect_b32 s{S_RL}, s{S_PW2}, s{S_PWO}
s_cselect_b32 s{S_RL+1}, s{S_PW2+1}, s{S_PWO+1}
s_cselect_b32 s{S_RL+2}, {1376*1024}, 0
s_cselect_b32 s{sT0}, 16, 0
s_cselect_b32 s{sDB}, 88, 32
s_cselect_b32 s{sDst}, {W2I - WOI}, 0
s_max_u32 s{S_RL+2}, s{S_RL+2}, {512*1024}
s_add_u32 s{sDst}, s{sDst}, {WOI}
s_lshl_b32 s{sDB}, s{sDB}, 10
s_sub_u32 s{sT0}, s{sU}, s{sT0}
s_mov_b32 s{sP}, 8192
s_lshl_b32 s{sSrc}, s{sT0}, 15
s_lshl_b32 s{sT2}, s{sJ}, 7
s_add_u32 s{sSrc}, s{sSrc}, s{sT2}
s_mul_i32 s{sT2}, s{sJ}, s{sDB}
s_lshl_b32 s{sT2}, s{sT2}, 1
s_add_u32 s{sDst}, s{sDst}, s{sT2}
s_lshl_b32 s{sT2}, s{sT0}, 11
s_add_u32 s{sDst}, s{sDst}, s{sT2}
s_mov_b32 s{sDA}, 1024
s_mov_b32 s{sSA}, 2048
s_mov_b32 s{sSB}, 256
s_mov_b32 s{sNF}, 4""")
        self.dma_lane_off(vRo, vL, t0, t1, 1024)
        a(f"v_lshrrev_b32 v{t0}, 5, v{vL}\nv_lshlrev_b32 v{vRa}, 10, v{t0}")
        a(f"v_bfe_u32 v{t0}, v{vL}, 4, 1\nv_lshl_add_u32 v{vRa}, v{t0}, 5, v{vRa}")
        a(f"v_and_b32 v{t0}, 1, v{vL}\nv_lshl_add_u32 v{vRa}, v{t0}, 4, v{vRa}")
        a(f"v_bfe_u32 v{t0}, v{vL}, 1, 1\nv_lshl_add_u32 v{vRa}, v{t0}, 3, v{vRa}")
        a(f"s_branch {Lj}")
        a.label(Lb)
        a(f"""s_mov_b32 s{S_RL}, s{S_PW1}
s_mov_b32 s{S_RL+1}, s{S_PW1+1}
s_cmp_lt_u32 s{sU}, 108
s_cselect_b32 s{S_RL+2}, {512*2752}, 0
s_sub_u32 s{sT0}, s{sU}, 60
s_and_b32 s{sT1}, s{sT0}, 15
s_lshr_b32 s{sT0}, s{sT0}, 4
s_mov_b32 s{sP}, {8*2752}
s_mul_i32 s{sT3}, s{sJ}, 11
s_lshl_b32 s{sT2}, s{sT0}, 2
s_add_u32 s{sT3}, s{sT3}, s{sT2}
s_mul_i32 s{sSrc}, s{sT1}, {32*2752}
s_lshl_b32 s{sT2}, s{sT3}, 5
s_add_u32 s{sSrc}, s{sSrc}, s{sT2}
s_lshl_b32 s{sDst}, s{sT3}, 14
s_lshl_b32 s{sT1}, s{sT1}, 10
s_add_u32 s{sDst}, s{sDst}, s{sT1}
s_add_u32 s{sDst}, s{sDst}, {W1I}
s_mov_b32 s{sDA}, 32768
s_mov_b32 s{sDB}, 16384
s_mov_b32 s{sSA}, 256
s_mov_b32 s{sSB}, 32
s_cmp_eq_u32 s{sT0}, 2
s_cselect_b32 s{sNF}, 3, 4
s_sub_u32 s{sT2}, 2752, s{sT2}""")
        self.dma_lane_off(vRo, vL, t0, t1, 2752)
        a(f"v_bfe_u32 v{t0}, v{vL}, 4, 1\nv_lshlrev_b32 v{t0}, 6, v{t0}\nv_and_b32 v{t1}, 3, v{vL}\nv_lshl_add_u32 v{t0}, v{t1}, 4, v{t0}")
        a(f"v_cmp_le_i32 vcc, s{sT2}, v{t0}\nv_mov_b32 v{t0}, 0x400000\nv_cndmask_b32 v{vRo}, v{vRo}, v{t0}, vcc")
        a(f"v_lshrrev_b32 v{t0}, 4, v{vL}\nv_lshlrev_b32 v{vRa}, 10, v{t0}")
        a(f"v_lshl_add_u32 v{vRa}, v{t1}, 3, v{vRa}")
        a.label(Lj)
        a(f"v_bfe_u32 v{t0}, v{vL}, 2, 2\nv_lshl_add_u32 v{vRa}, v{t0}, 6, v{vRa}")
        a(f"s_lshl_b32 s{sT0}, s{sT5}, 12\ns_add_u32 s{sU2}, s{sT0}, {WRING}\nv_add_u32 v{vRa}, s{sU2}, v{vRa}")
        a(f"v_add_u32 v{vRa+1}, s{sSB}, v{vRa}\nv_add_u32 v{vRa+2}, s{sSA}, v{vRa}\nv_add_u32 v{vRa+3}, s{sSA}, v{vRa+1}")
        def rl_issue():
            for o in range(4):
                a(f"s_add_u32 m0, s{sU2}, {o*1024}")
                a.vmem(f"buffer_load_dwordx4 v{vRo}, {sr(S_RL,4)}, s{sSrc} offen lds", "rl")
                if o < 3: a(f"s_add_u32 s{sSrc}, s{sSrc}, s{sP}")
        L7, Lj7 = a.newlabel("w7"), a.newlabel("w7j")
        a(f"s_cmp_eq_u32 s{sW}, 7\ns_cbranch_scc1 {L7}")
        a.vm = []
        for n in range(7):
            if n + 1 >= 4: a.wait_vm(f"w{n+1}")
            a("s_barrier")
            if n <= 3: self.wdma_kind(vWoff, n + 4, f"w{n+4}")
            if n == 4: rl_issue()
        a(f"s_branch {Lj7}")
        a.label(L7)
        a.restore(st7)
        mark = len(a.L)
        self.gemv_finish(G7, sU3)
        body = a.L[mark:]; del a.L[mark:]
        tail = 4
        per = -(-(len(body) - tail) // 5)
        for n in range(7):
            a("s_barrier")
            if n < 5: a.L += body[n * per:min((n + 1) * per, len(body) - tail)]
            if n == 4: a.L += body[len(body) - tail:]; rl_issue()
        a.label(Lj7)
        a("s_barrier")
        self.stamp(5)
        Ls = a.newlabel("norl2")
        a(f"s_cmp_ge_u32 s{sU}, 108\ns_cbranch_scc1 {Ls}")
        a.wait_vm(None)
        RT = 16
        for f in range(4):
            for kq in range(2):
                a.ds(f"ds_read_b64_tr_b16 {vr(RT+4*f+2*kq,2)}, v{vRa+f} offset:{kq*512}", f"r{f}")
        a(f"s_add_u32 s{sT1}, s{sDst}, s{sDB}\ns_add_u32 s{sT2}, s{sDst}, s{sDA}\ns_add_u32 s{sT3}, s{sT1}, s{sDA}")
        for f, sd in enumerate((sDst, sT1, sT2, sT3)):
            a.wait_lg(f"r{f}")
            if f == 3: a(f"s_cmp_eq_u32 s{sNF}, 3\ns_cbranch_scc1 {Ls}")
            a.vmem(f"buffer_store_dwordx4 {vr(RT+4*f,4)}, v{vL16}, {sr(S_WS,4)}, s{sd} offen sc1")
        a.label(Ls)
        self.stamp(6)
        G = 128
        a(f"s_lshl_b32 s{sT1}, s{sT5}, 10\ns_add_u32 s{sT2}, s{sT1}, {MODP + 1536*4}\ns_cmp_ge_u32 s{sT5}, 2\ns_cselect_b32 s{sT3}, 1.0, 0")
        a(f"s_lshl_b32 s{sT1}, s{sT5}, 9\ns_add_u32 s{sT1}, s{sT1}, {MV}\nv_lshlrev_b32 v4, 3, v{vL}\nv_add_u32 v4, s{sT1}, v4")
        self.gather(G, vL16, sT2, sT3, "m2")
        a.ds(f"ds_write_b64 v4, {vr(G+4,2)}")
        a.wait_lg(None)
        a.vm = []
        self.stamp(7)

    def end(self):
        self.flush_stamps()
        self.a("s_endpgm")

    def role(self, r):
        a = self.a
        a.vm = []; a.lg = []
        self.vstamp = 1
        if self.stamps: a(f"v_mov_b32 v{self.vstamp}, 0")
        self.stamp(0)
        (self.p1_M if r == "M" else self.p1_H)()
        if self.stop_after == 1: return self.end()
        from phases import p2, p3, p4, p5
        p2(self, r)
        if self.stop_after == 2: return self.end()
        p3(self, r)
        if self.stop_after == 3: return self.end()
        p4(self, r)
        if self.stop_after == 4: return self.end()
        p5(self, r)
        self.end()

    def build(self):
        a = self.a
        self.prologue()
        self.role("M")
        a.label("L_H")
        self.role("H")
        a.label("L_exit")
        a("s_endpgm")
        a.label("L_code_end")
        rep = []
        body, added = fix_hazards(a.L, rep)
        self.hazard_report = rep
        hdr = open("adaLN_cond__softmax_full_mha__dense_activation_relu__prompt.s.ref").read().split("; Override launch")[0]
        src = hdr + f"; @launch grid=(256,1,1) block=(512,1,1) lds={LDSSZ}\n"
        src += f'.amdgcn_target "amdgcn-amd-amdhsa--gfx950"\n.text\n.globl {KNAME}\n.p2align 8\n.type {KNAME},@function\n{KNAME}:\n'
        src += "\n".join(body) + "\n"
        src += f""".section .rodata,"a"
.p2align 6
.amdhsa_kernel {KNAME}
  .amdhsa_next_free_vgpr 256
  .amdhsa_next_free_sgpr 102
  .amdhsa_accum_offset 256
  .amdhsa_group_segment_fixed_size 0
  .amdhsa_kernarg_size 88
  .amdhsa_user_sgpr_count 2
  .amdhsa_user_sgpr_kernarg_segment_ptr 1
  .amdhsa_system_sgpr_workgroup_id_x 1
.end_amdhsa_kernel
"""
        return src

if __name__ == "__main__":
    import argparse
    ap = argparse.ArgumentParser()
    ap.add_argument("-o", default="out.s")
    ap.add_argument("--stamps", action="store_true")
    ap.add_argument("--stop", type=int, default=None)
    ap.add_argument("--slow", action="store_true")
    ap.add_argument("--rep", action="store_true")
    ap.add_argument("--opt", action="append", default=[])
    args = ap.parse_args()
    g = Gen(stamps=args.stamps, stop_after=args.stop, force_slow=args.slow, opts=dict(o.split("=") for o in args.opt))
    s = g.build()
    open(args.o, "w").write(s)
    if args.rep:
        for r in g.hazard_report: print(r)
    print("wrote", args.o, len(s), "bytes;", len(g.hazard_report), "nops inserted", file=sys.stderr)
```

```python
from dsl import *
from mega import *

vL, vL16 = 0, 2
vXoff, vBoff = 6, 7
B1 = 128
BO = 80
XR = 112
X2 = 8
ACC = 16
UX, UY = 112, 120
RSTD = 108
RC = 104
sXO = sLN
sCO = sLN + 1
sB2a, sB2b = sLN + 2, sLN + 3
sBOa, sBOb = sLN + 4, sLN + 5
sFP, sFW = sLN + 19, sLN + 20
sLP, sLW = sLN + 21, sLN + 22
LFLAG2, LFLAG4 = 1024, 1152
P4_ORDER = [2 * k for k in range(8)] + [2 * k + 1 for k in range(8)]

def b2reg(role, f):
    if role == "M":
        return 192 + 4 * f if f < 16 else B1 + 4 * P4_ORDER[f - 16]
    return B1 + 64 * (f & 1) + 4 * P4_ORDER[f >> 1]

def ld_b2(g, role, f):
    a = g.a
    m, e = f >> 1, f & 1
    if m and m % 4 == 0:
        s = sB2b if e else sB2a
        a(f"s_add_u32 s{s}, s{s}, 4096")
    a.vmem(f"buffer_load_dwordx4 {vr(b2reg(role,f),4)}, v{vBoff}, {sr(S_WS,4)}, s{sB2b if e else sB2a} offen offset:{(m&3)*1024} sc1", "b2")

def gemm_setup(g):
    a = g.a
    a(f"s_lshl_b32 s{sT2}, s{sR}, 3\ns_add_u32 s{sFP}, s{sT2}, s{sJ}\ns_lshl_b32 s{sFP}, s{sFP}, 7\ns_add_u32 s{sFW}, s{sT2}, s{sW}\ns_lshl_b32 s{sFW}, s{sFW}, 7")
    a(f"s_mul_i32 s{sLP}, s{sFP}, 10\ns_add_u32 s{sLP}, s{sLP}, {LREC}\ns_mul_i32 s{sLW}, s{sFW}, 10\ns_add_u32 s{sLW}, s{sLW}, {LREC}")
    a(f"s_lshr_b32 s{sT2}, s{sW}, 2\ns_lshl_b32 s{sT3}, s{sT2}, 8\nv_xor_b32 v{vBoff}, s{sT3}, v{vL16}")
    a(f"s_and_b32 s{sT4}, s{sW}, 1\ns_lshl_b32 s{sCO}, s{sT4}, 6\ns_lshl_b32 s{sT2}, s{sT2}, 5\ns_add_u32 s{sCO}, s{sCO}, s{sT2}")
    a(f"v_lshrrev_b32 v5, 5, v{vL}\nv_lshlrev_b32 v5, 4, v5\nv_and_b32 v{vXoff}, 31, v{vL}\nv_lshl_add_u32 v{vXoff}, v{vXoff}, 10, v5")
    a(f"s_lshl_b32 s{sXO}, s{sR}, 1\ns_bfe_u32 s{sT2}, s{sW}, 0x10001\ns_add_u32 s{sXO}, s{sXO}, s{sT2}\ns_lshl_b32 s{sXO}, s{sXO}, 15")
    a(f"s_lshl_b32 s{sT2}, s{sJ}, 7\ns_add_u32 s{sXO}, s{sXO}, s{sT2}\ns_add_u32 s{sXO}, s{sXO}, s{sCO}")
    a(f"s_lshl_b32 s{sT2}, s{sJ}, 1\ns_add_u32 s{sT2}, s{sT2}, s{sT4}\ns_lshr_b32 s{sT3}, s{sW}, 1")
    a(f"s_lshl_b32 s{sBOa}, s{sT2}, 15\ns_lshl_b32 s{sT4}, s{sT3}, 12\ns_add_u32 s{sBOa}, s{sBOa}, s{sT4}\ns_add_u32 s{sBOa}, s{sBOa}, {WOI}\ns_add_u32 s{sBOb}, s{sBOa}, 16384")
    a(f"s_mul_i32 s{sB2a}, s{sT2}, {88*1024}\ns_mul_i32 s{sT3}, s{sT3}, {11*1024}\ns_add_u32 s{sB2a}, s{sB2a}, s{sT3}\ns_add_u32 s{sB2a}, s{sB2a}, {W2I}\ns_add_u32 s{sB2b}, s{sB2a}, {44*1024}")

def p2(g, role):
    a = g.a
    vV, vIdx = 3, 4
    Q0, Q1, O0, O1, S0, S1, KR, VR = 8, 12, 16, 32, 48, 64, 80, 112
    NLOC = 4
    t0, t1 = 5, 48
    par = 1 if role == "H" else 0
    opt = lambda k, d: int(g.opts.get(k, d))
    gemm_setup(g)
    if role == "H":
        a(f"s_setprio 0\ns_lshl_b32 s{sT1}, s{sW}, 10\ns_add_u32 m0, s{sT1}, {XPL}\ns_sub_u32 s{sT2}, s{sXO}, 32")
        a.vmem(f"buffer_load_dwordx4 v{vXoff}, {sr(S_X,4)}, s{sXO} offen lds")
        a(f"s_add_u32 m0, s{sT1}, {XPL - 4096}")
        a.vmem(f"buffer_load_dwordx4 v{vXoff}, {sr(S_X,4)}, s{sT2} offen lds")
    sKF, sMASK, sVL, sGL = sLN + 6, sLN + 7, sLN + 17, sLN + 23
    a(f"s_and_b32 s{sT1}, s{sW}, 3")
    a(f"s_lshl_b32 s{sT0}, s{sJ}, 2\ns_add_u32 s{sT0}, s{sT0}, s{sT1}\ns_lshl_b32 s{sKVB}, s{sT0}, 17\ns_add_u32 s{sKVB}, s{sKVB}, {KV + par*2048}")
    a(f"s_lshl_b32 s{sKF}, s{sT0}, 12\ns_add_u32 s{sKF}, s{sKF}, {FLAG1}")
    a(f"s_lshl_b32 s{sVL}, s{sW}, 13\ns_add_u32 s{sVL}, s{sVL}, {VRING}")
    a(f"v_lshrrev_b32 v{t0}, 5, v{vL}\nv_and_b32 v{t1}, 15, v{vL}\nv_lshlrev_b32 v{t1}, 4, v{t1}\nv_lshl_add_u32 v{vV}, v{t0}, 8, v{t1}\nv_add_u32 v{vV}, s{sVL}, v{vV}")
    a(f"v_mov_b32 v{vIdx}, 0xdddddddd")
    if role == "H":
        a(f"s_lshl_b32 s{sT2}, s{sT1}, 11\ns_add_u32 s{sT2}, s{sT2}, {QX}\nv_add_u32 v{t0}, s{sT2}, v{vL16}")
        a.ds(f"ds_read_b128 {vr(Q0,4)}, v{t0} offset:1024")
        a.ds(f"ds_read_b128 {vr(Q1,4)}, v{t0}")
    for i in range(32): a(f"v_mov_b32 v{O0+i}, 0")
    a(f"v_and_b32 v{t1}, 27, v{vL}\nv_cmp_eq_u32 vcc, 16, v{t1}\nv_mov_b32 v{t1}, 0x3f803f80\nv_cndmask_b32 v{t1}, 0, v{t1}, vcc")
    for i in range(16): a(f"v_mov_b32 v{VR+i}, v{t1}")
    D = opt("dist", 6)
    issue = {n: [] for n in range(32)}; t = NLOC
    for n in range(1, 32):
        while len(issue[n]) < 2 and t < 32 and t <= n + D: issue[n].append(t); t += 1
    assert D <= 7 and t == 32
    if role == "H":
        a(f"s_mul_i32 s{sB1}, s{sJ}, 11\ns_add_u32 s{sB1}, s{sB1}, s{sT1}")
    else:
        a(f"s_mul_i32 s{sB1}, s{sJ}, 11\ns_min_u32 s{sT2}, s{sT1}, 2\ns_add_u32 s{sB1}, s{sB1}, s{sT2}\ns_add_u32 s{sB1}, s{sB1}, 8")
    a(f"s_lshl_b32 s{sB1b}, s{sB1}, 14\ns_add_u32 s{sB1b}, s{sB1b}, {W1I}")
    FLA, FLG, FKV = 252, 253, 254
    a(f"s_add_u32 s{sT5}, s{sKF}, {LFLAG1 - FLAG1}\ns_and_b32 s{sKVO}, s{sR}, 28")
    a(f"v_add_u32 v{FLA}, s{sKVO}, v{vL}\nv_and_b32 v{FLA}, 31, v{FLA}\nv_lshlrev_b32 v{FLA}, 7, v{FLA}\ns_lshl_b32 s{sKVO}, s{sKVO}, 12")
    a.wait_lg(None)
    ldflags = f"buffer_load_dword v{FKV}, v{FLA}, {sr(S_WS,4)}, s{sKF} offen sc1"
    def repoll(bits, name):
        L = a.newlabel("rp_" + name); Ld = a.newlabel("rpd_" + name)
        a(f"s_mov_b32 s{sCNT}, {POLL_LIMIT}")
        a.label(L)
        a(ldflags)
        a(f"s_sub_u32 s{sCNT}, s{sCNT}, 1\ns_cmp_eq_u32 s{sCNT}, 0\ns_waitcnt vmcnt(0)\ns_cbranch_scc1 {Ld}")
        a(f"v_cmp_ne_u32 vcc, s{sTAG}, v{FKV}\ns_mov_b32 s{sMASK}, vcc_lo\ns_and_b32 s{sT4}, vcc_lo, {hex(bits)}\ns_cbranch_scc1 {L}")
        a.label(Ld)
    LAZY = opt("lazy", 8)
    a("s_mov_b64 exec, 15")
    poll2(g, lambda s: f"buffer_load_dword v{FKV}, v{FLA}, {sr(S_WS,4)}, s{s} offen sc1", sT5, sKF, [FKV], "kv0")
    a("s_mov_b64 exec, -1")
    ool = []
    def need(n):
        if n < NLOC or n > LAZY + NLOC: return
        if n == NLOC:
            a.wait_vm("fkv")
            a(f"v_cmp_ne_u32 vcc, s{sTAG}, v{FKV}\ns_mov_b32 s{sMASK}, vcc_lo")
        bits = (1 << n) if n < LAZY + NLOC else (0xffffffff << n) & 0xffffffff
        Lo, Lb = a.newlabel("kvw"), a.newlabel("kvb")
        a(f"s_and_b32 s{sT4}, s{sMASK}, {hex(bits)}\ns_cbranch_scc1 {Lo}")
        a.label(Lb)
        ool.append((Lo, Lb, bits))
    g.stamp(8)
    kreg = lambda n: KR + 4 * (n % 8)
    vreg = lambda n: VR + 8 * (n & 1)
    def ldK(n):
        a(f"s_add_u32 s{sT0}, s{sKVB}, s{sKVO}")
        a.vmem(f"buffer_load_dwordx4 {vr(kreg(n),4)}, v{vL16}, {sr(S_WS,4)}, s{sT0} offen sc1", f"k{n}")
    def ldV(n):
        a(f"s_add_u32 m0, s{sVL}, {(n % 8) * 1024 - 1024}\ns_add_u32 s{sKVO}, s{sKVO}, 4096")
        a.vmem(f"buffer_load_dwordx4 v{vL16}, {sr(S_WS,4)}, s{sT0} offen offset:1024 sc1 lds", f"v{n}")
    wrap = f"s_and_b32 s{sKVO}, s{sKVO}, 0x1ffff"
    def rdV(n):
        a.wait_vm(f"v{n}")
        a(f"s_mov_b64 exec, {sr(sVM,2)}")
        a.ds(f"ds_read_b128 {vr(vreg(n),4)}, v{vV} offset:{(n % 8) * 1024}", f"V{n}")
        a.ds(f"ds_read_b128 {vr(vreg(n)+4,4)}, v{vV} offset:{(n % 8) * 1024 + 512}", f"V{n}")
        a("s_mov_b64 exec, -1")
    for n in range(NLOC):
        ldK(n); ldV(n)
    a(wrap)
    a.vmem(ldflags, "fkv")
    def rl_post():
        a.wait_vm("rs")
        Ls = a.newlabel("notlast")
        a(f"v_mov_b32 v{RLV}, {RLCNT}\nv_mov_b32 v{RLV+1}, 1\ns_mov_b64 exec, 1")
        a.ds(f"ds_add_rtn_u32 v{RLV+1}, v{RLV}, v{RLV+1}")
        a(f"s_mov_b64 exec, -1\ns_lshl_b32 s{sT1}, s{sJ}, 5\ns_add_u32 s{sT1}, s{sT1}, s{sR}\ns_lshl_b32 s{sT1}, s{sT1}, 7\ns_add_u32 s{sT1}, s{sT1}, {FLAG1B}")
        a.wait_lg(None)
        a(f"v_readfirstlane_b32 s{sT2}, v{RLV+1}\ns_cmp_lg_u32 s{sT2}, 3\ns_cbranch_scc1 {Ls}")
        a(f"v_mov_b32 v{t0}, s{sTAG}\nv_lshlrev_b32 v{FLG}, 2, v{vL}\ns_mov_b32 exec_hi, 0")
        a.vmem(f"buffer_store_dword v{t0}, v{FLG}, {sr(S_WS,4)}, s{sT1} offen sc1", None, cond=True)
        a("s_mov_b64 exec, -1")
        a.label(Ls)
    prio = {int(k): int(v) for k, v in (x.split(":") for x in g.opts.get("prio" + role, "0:3,15:2,27:1,31:0" if role == "M" else "0:3,22:2,29:1,31:0").split(",") if x)}
    a.wait_vm("k0")
    a(f"v_mfma_f32_32x32x16_bf16 {vr(S0,16)}, {vr(kreg(0),4)}, {vr(Q0,4)}, 0")
    rdV(0)
    def ex(S, lo, hi):
        for i in range(lo, hi): a(f"v_exp_f32 v{S+i}, v{S+i}")
    def smf(O, V, P): a(f"v_smfmac_f32_32x32x32_bf16 {vr(O,16)}, {vr(V,4)}, {vr(P,8)}, v{vIdx}")
    nb1 = 32 if role == "H" else 16
    side = [0]
    def ldside(cnt):
        for _ in range(cnt):
            n = side[0]
            if n >= nb1: return
            if "b1" in g.opts.get("skip", ""): side[0] += 1; continue
            if n and n % 4 == 0:
                a(f"s_add_u32 s{sB1b}, s{sB1b}, {4096 if n != 16 else 4096 + 3*16384}")
            a.vmem(f"buffer_load_dwordx4 {vr(B1+4*n,4)}, v{vL16}, {sr(S_WS,4)}, s{sB1b} offen offset:{(n&3)*1024} sc1", "bo")
            side[0] += 1
    def ldBO(f):
        m, e = f >> 1, f & 1
        a.vmem(f"buffer_load_dwordx4 {vr(BO+4*f,4)}, v{vBoff}, {sr(S_WS,4)}, s{sBOb if e else sBOa} offen offset:{m*1024} sc1", "bo")
    ST_GV = opt("gv", 2)
    RL_ISS = [int(x) for x in g.opts.get("rliss", "0,0,1,1").split(",")]
    RL_RD = opt("rlrd", 3); RL_POST = opt("rlpost", RL_RD + 3)
    ST_LDF = opt("ldf" + role, 17 if role == "M" else RL_POST + 5); ST_CHK = ST_LDF + 2
    GV = 200
    def touch():
        a(f"v_lshlrev_b32 v5, 7, v{vL}\ns_mov_b64 exec, 0x3ff")
        a.vmem(f"buffer_load_dword v5, v5, {sr(S_WS,4)}, s{sLP} offen sc1", None, cond=True)
        a("s_mov_b64 exec, -1")
    last_need = max(n for n in issue for t in issue[n] if t <= LAZY + NLOC)
    def side_job(n):
        skip = g.opts.get("skip", "")
        if "all" in skip: return
        if role == "M":
            def gi():
                a(f"s_add_u32 s{sGL}, s{sI}, 16")
                g.gemv_issue(GV, sGL, sU3, cond=True)
            if "gv" not in skip:
                if n == ST_GV: only(g, 3, gi)
                if ST_GV < n < ST_GV + 8: only(g, 3, lambda: g.gemv_octet(GV, sGL, n - ST_GV, True))
                if n == ST_GV + 12: only(g, 3, lambda: g.gemv_finish(GV, sU3, cond=True))
            if n == opt("touch", 22): only(g, 1, touch)
        else:
            if "rlat" not in g.opts:
                g.rl_issue([o for o, x in enumerate(RL_ISS) if x == n])
            if n == RL_RD: g.rl_read()
            if n == RL_RD + 1: g.rl_store()
            if n == RL_POST: rl_post()
        fl = f"buffer_load_dword v{FLG}, v{FLA}, {sr(S_WS,4)}, s{sT1} offen sc1"
        if n == ST_LDF:
            a(f"s_lshl_b32 s{sT1}, s{sJ}, 12\ns_add_u32 s{sT1}, s{sT1}, {FLAG1B}")
            a.vmem(fl, "flg")
        if n == ST_CHK:
            a.wait_vm("flg")
            Lok = a.newlabel("f1bok")
            a(f"v_cmp_ne_u32 vcc, s{sTAG}, v{FLG}\ns_nop 0")
            a(f"s_cbranch_vccz {Lok}")
            st = a.save()
            g.poll([fl], [FLG], "f1b")
            a.restore(st)
            a.label(Lok)
    assert ST_CHK < 24
    span = 31 - ST_CHK
    for n in range(32):
        tl = issue[n]
        want = 0 if n <= ST_CHK else -(-nb1 * (n - ST_CHK) // span) - side[0]
        ex(S0, 0, 2)
        if n > 0: smf(O1, vreg(n - 1) + 4, S1 + 8)
        if n + 1 < 32: rdV(n + 1)
        ex(S0, 2, 5)
        a(f"v_mfma_f32_32x32x16_bf16 {vr(S1,16)}, {vr(kreg(n),4)}, {vr(Q1,4)}, 0")
        a.wait_lg(f"V{n}")
        ex(S0, 5, 10)
        smf(O0, vreg(n), S0)
        if tl:
            need(tl[0]); ldK(tl[0])
        if n >= 24: ldBO(n - 24)
        ex(S0, 10, 16)
        ex(S1, 0, 2)
        smf(O0, vreg(n) + 4, S0 + 8)
        if tl: ldV(tl[0])
        else: ldside(want // 2); want -= want // 2
        ex(S1, 2, 5)
        if n + 1 < 32: a(f"v_mfma_f32_32x32x16_bf16 {vr(S0,16)}, {vr(kreg(n+1),4)}, {vr(Q0,4)}, 0")
        if tl: a(wrap)
        ex(S1, 5, 10)
        smf(O1, vreg(n), S1)
        if n in prio: a(f"s_setprio {prio[n]}")
        for t in tl[1:]:
            need(t); ldK(t); ldV(t); a(wrap)
        side_job(n)
        ldside(want)
        ex(S1, 10, 16)
        if g.opts.get("astamp") and n in (7, 15, 23): g.stamp(21 + n // 8)
    a(f"s_mul_i32 s{sT2}, s{sW}, 2304\ns_add_u32 s{sT2}, s{sT2}, {CB}")
    smf(O1, vreg(31) + 4, S1 + 8)
    assert side[0] == nb1
    g.stamp(9)
    a(f"s_xor_b32 s{sT3}, s{sW}, 4\ns_mul_i32 s{sT3}, s{sT3}, 2304\ns_add_u32 s{sT3}, s{sT3}, {CB}")
    ca, cb_, cc, cd = S0, S0 + 1, S0 + 2, S0 + 3
    a(f"v_add_u32 v{ca}, s{sT2}, v{vL16}\nv_lshlrev_b32 v{cd}, 2, v{vL}\nv_add_u32 v{cb_}, s{sT2}, v{cd}\nv_add_u32 v{cc}, s{sT3}, v{vL16}\nv_add_u32 v{cd}, s{sT3}, v{cd}")
    a(f"s_lshl_b32 s{sT2}, s{sR}, 5\ns_lshl_b32 s{sT1}, s{sJ}, 2\ns_add_u32 s{sT2}, s{sT2}, s{sT1}\ns_and_b32 s{sT1}, s{sW}, 3\ns_add_u32 s{sT2}, s{sT2}, s{sT1}")
    a(f"s_lshl_b32 s{sT2}, s{sT2}, 11\ns_add_u32 s{sT2}, s{sT2}, {OIMG + par*1024}")
    a.ds(f"ds_write_b128 v{ca}, {vr(O1,4)}")
    a.ds(f"ds_write_b128 v{ca}, {vr(O1+4,4)} offset:1024")
    a.ds(f"ds_write_b32 v{cb_}, v{O1+8} offset:2048")
    a.wait_lg(None)
    a("s_barrier")
    a.ds(f"ds_read_b32 v{O1+8}, v{cd} offset:2048", "l")
    a.ds(f"ds_read_b128 {vr(O1,4)}, v{cc}")
    a.ds(f"ds_read_b128 {vr(O1+4,4)}, v{cc} offset:1024")
    a(f"s_mov_b32 s{sT0}, {hex(f2u(2.0**60))}")
    a.wait_lg("l")
    a(f"v_add_f32 v{O0+8}, v{O0+8}, v{O1+8}")
    Lfast = a.newlabel("fast")
    if not g.force_slow:
        a(f"v_cmp_nle_f32 vcc, {hex(f2u(2.0**-60))}, v{O0+8}")
        a(f"v_cmp_nge_f32 {sr(sPM,2)}, s{sT0}, v{O0+8}")
    a.wait_lg(None)
    for i in range(4): a(f"v_pk_add_f32 {vr(O0+2*i,2)}, {vr(O0+2*i,2)}, {vr(O1+2*i,2)}")
    if not g.force_slow:
        a(f"s_or_b64 vcc, vcc, {sr(sPM,2)}")
        a(f"s_cbranch_vccz {Lfast}")
    st = a.save()
    a(f"v_subrev_u32 v{vV}, s{sVL}, v{vV}")
    slow_path(g, par, Q0, O0, O1, S0, vV, vIdx)
    a(f"s_branch {Lfast}")
    for Lo, Lb, bits in ool:
        a.label(Lo)
        repoll(bits, "kv")
        a(f"s_branch {Lb}")
    a.restore(st)
    a.label(Lfast)
    a(f"v_rcp_f32 v{O0+8}, v{O0+8}")
    for i in range(4): a(f"v_pk_mul_f32 {vr(O0+2*i,2)}, {vr(O0+2*i,2)}, {vr(O0+8,2)} op_sel_hi:[1,0]")
    for i in range(4): a(f"v_cvt_pk_bf16_f32 v{S1+i}, v{O0+2*i}, v{O0+2*i+1}")
    a.vmem(f"buffer_store_dwordx4 {vr(S1,4)}, v{vL16}, {sr(S_WS,4)}, s{sT2} offen sc1", "os")
    GG = 16; sGB, sGA = sLN + 17, sLN + 18
    if role == "H":
        a(f"s_sub_u32 s{sT1}, s{sW}, 4\ns_lshl_b32 s{sGB}, s{sT1}, 10\ns_add_u32 s{sGB}, s{sGB}, {MODP + 1536*4}\ns_cmp_ge_u32 s{sW}, 6\ns_cselect_b32 s{sGA}, 1.0, 0")
        g.gather_issue(GG, vL16, sGB)
    else:
        def gi():
            a(f"v_bfe_u32 v3, v{vL}, 4, 1\nv_mul_u32_u24 v3, 6144, v3\nv_and_b32 v4, 15, v{vL}\nv_lshl_add_u32 v3, v4, 4, v3")
            a(f"s_lshl_b32 s{sGB}, s{sJ}, 8\ns_add_u32 s{sGB}, s{sGB}, {MODP + 4096}")
            g.gather_issue(GG, 3, sGB, cond=True)
        only(g, 0, gi)
    a(f"s_lshl_b32 s{sT1}, s{sW}, 10\nv_add_u32 v4, s{sT1}, v{vL16}")
    a.ds(f"ds_read_b128 {vr(XR,4)}, v4 offset:{XPL}")
    a.wait_lg(None)
    g.unpack(X2, XR, 4)
    a.wait_vm("os")
    a("s_barrier")
    post_flag(g, role, FLAG2, LFLAG2)
    g.stamp(10)
    if role == "H":
        g.gather_finish(GG, vL16, sGB, sGA, "m2")
        a(f"s_lshl_b32 s{sT1}, s{sW}, 9\ns_add_u32 s{sT1}, s{sT1}, {MV - 2048}\nv_lshlrev_b32 v4, 3, v{vL}\nv_add_u32 v4, s{sT1}, v4")
        a.ds(f"ds_write_b64 v4, {vr(GG+4,2)}")
    else:
        def gf():
            g.gather_finish(GG, 3, sGB, None, "gg")
            a(f"v_and_b32 v4, 31, v{vL}\nv_lshlrev_b32 v4, 3, v4\nv_add_u32 v4, {MV2}, v4")
            a.ds(f"ds_write_b64 v4, {vr(GG+4,2)}")
        only(g, 0, gf)
    a.wait_lg(None)

def only(g, w, fn):
    a = g.a
    Ls = a.newlabel("only")
    a(f"s_cmp_lg_u32 s{sW}, {w}\ns_cbranch_scc1 {Ls}")
    st = a.save()
    issued = []
    orig = a.vmem
    def rec(text, tag=None, cond=False):
        orig(text, tag, cond)
        if cond: issued.append((tag, True))
    a.vmem = rec
    fn()
    del a.vmem
    a.vm = st[0] + issued
    a.lg = st[1]
    a.label(Ls)

def ub_vectors(g, role, half):
    a = g.a
    nt = 2 if role == "H" else 1
    vM = 109; FR = 64
    if half == 0:
        a(f"v_lshrrev_b32 v5, 4, v{vL}\nv_lshlrev_b32 v{vM}, 4, v5\nv_bfe_u32 v5, v{vL}, 3, 1\nv_xor_b32 v5, 1, v5\nv_lshl_add_u32 v{vM}, v5, 10, v{vM}\nv_add_u32 v{vM}, {MV}, v{vM}")
    for k in range(8): a.ds(f"ds_read_b128 {vr(FR+4*k,4)}, v{vM} offset:{(8*half+k)*64}", f"m{k}")
    for k in range(8):
        a.wait_lg(f"m{k}")
        ks = 8 * half + k
        for ct in range(nt):
            c = "0" if ks == 0 else vr(UX + 4 * ct, 4)
            a(f"v_mfma_f32_16x16x32_bf16 {vr(UX+4*ct,4)}, {vr(B1+64*ct+4*ks,4)}, {vr(FR+4*k,4)}, {c}")
    if half == 1:
        for i in range(4 * nt): a(f"v_mov_b32_dpp v{UY+i}, v{UX+i} row_ror:8 row_mask:0xf bank_mask:0xf")

def slow_path(g, par, Q0, O0, O1, S0, vV, vIdx):
    a = g.a
    K, V0, V1, NM, M = 12, 64, 68, O1, 72
    a.wait_vm(None)
    a(f"s_sub_u32 s{sT0}, s{sKVB}, {par*2048}\ns_mov_b32 s{sT1}, 64\nv_mov_b32 v{M}, 0xff800000")
    L1 = a.newlabel("slow1")
    a.label(L1)
    a(f"buffer_load_dwordx4 {vr(K,4)}, v{vL16}, {sr(S_WS,4)}, s{sT0} offen sc1\ns_add_u32 s{sT0}, s{sT0}, 2048\ns_waitcnt vmcnt(0)")
    a(f"v_mfma_f32_32x32x16_bf16 {vr(S0,16)}, {vr(K,4)}, {vr(Q0,4)}, 0")
    for i in range(8): a(f"v_max3_f32 v{M}, v{M}, v{S0+2*i}, v{S0+2*i+1}")
    a(f"s_sub_u32 s{sT1}, s{sT1}, 1\ns_cmp_lg_u32 s{sT1}, 0\ns_cbranch_scc1 {L1}")
    a(f"v_mov_b32 v{M+1}, v{M}\nv_permlane32_swap_b32 v{M}, v{M+1}\nv_max_f32 v{M}, v{M}, v{M+1}")
    for i in range(16): a(f"v_sub_f32 v{NM+i}, 0, v{M}\nv_mov_b32 v{O0+i}, 0")
    for i in range(8): a(f"v_mov_b32 v{V0+i}, 0x3f803f80")
    a(f"s_sub_u32 s{sT0}, s{sKVB}, {par*2048}\ns_mov_b32 s{sT1}, 64")
    L2 = a.newlabel("slow2")
    a.label(L2)
    a(f"buffer_load_dwordx4 {vr(K,4)}, v{vL16}, {sr(S_WS,4)}, s{sT0} offen sc1")
    a(f"s_mov_b64 exec, {sr(sVM,2)}")
    a(f"buffer_load_dwordx4 {vr(V0,4)}, v{vV}, {sr(S_WS,4)}, s{sT0} offen offset:1024 sc1")
    a(f"buffer_load_dwordx4 {vr(V1,4)}, v{vV}, {sr(S_WS,4)}, s{sT0} offen offset:1536 sc1")
    a(f"s_mov_b64 exec, -1\ns_add_u32 s{sT0}, s{sT0}, 2048\ns_waitcnt vmcnt(0)")
    a(f"v_mfma_f32_32x32x16_bf16 {vr(S0,16)}, {vr(K,4)}, {vr(Q0,4)}, {vr(NM,16)}")
    for i in range(16): a(f"v_exp_f32 v{S0+i}, v{S0+i}")
    a(f"v_smfmac_f32_32x32x32_bf16 {vr(O0,16)}, {vr(V0,4)}, {vr(S0,8)}, v{vIdx}")
    a(f"v_smfmac_f32_32x32x32_bf16 {vr(O0,16)}, {vr(V1,4)}, {vr(S0+8,8)}, v{vIdx}")
    a(f"s_sub_u32 s{sT1}, s{sT1}, 1\ns_cmp_lg_u32 s{sT1}, 0\ns_nop 7\ns_cbranch_scc1 {L2}")
    a("s_nop 7\ns_nop 7")

def post_flag(g, role, base, lbase):
    a = g.a
    Ls = a.newlabel("noflag")
    a(f"s_cmp_lg_u32 s{sW}, s{sJ}\ns_cbranch_scc1 {Ls}")
    a(f"v_mov_b32 v5, s{sTAG}\nv_lshlrev_b32 v4, 2, v{vL}\ns_mov_b32 exec_hi, 0")
    a(f"s_add_u32 s{sT0}, s{sLP}, {lbase}")
    a.vmem(f"buffer_store_dword v5, v4, {sr(S_WS,4)}, s{sT0} offen", None, cond=True)
    a(f"s_add_u32 s{sT0}, s{sFP}, {base}")
    a.vmem(f"buffer_store_dword v5, v4, {sr(S_WS,4)}, s{sT0} offen sc1", None, cond=True)
    a("s_mov_b64 exec, -1")
    a.label(Ls)

def poll2(g, mk, s_l, s_g, cmps, name):
    a = g.a
    g.poll([f"s_and_b32 s{sT4}, s{sCNT}, 7", f"s_cmp_eq_u32 s{sT4}, {1 if g.opts.get('dual', '1') == '1' else 's%d' % sT4}", f"s_cselect_b32 s{sT4}, s{s_g}, s{s_l}", mk(sT4)], cmps, name)

def wait_flag(g, base, lbase, name):
    a = g.a
    a(f"s_add_u32 s{sT0}, s{sFW}, {base}\ns_add_u32 s{sT5}, s{sLW}, {lbase}")
    Ls = a.newlabel("own")
    a(f"s_cmp_eq_u32 s{sW}, s{sJ}\ns_cbranch_scc1 {Ls}")
    assert all(e[1] for e in a.vm), a.vm
    a("s_mov_b64 exec, 1")
    poll2(g, lambda s: f"buffer_load_dword v5, off, {sr(S_WS,4)}, s{s} sc1", sT5, sT0, [5], name)
    a("s_mov_b64 exec, -1")
    a.label(Ls)

def reduce4(g, RB, tmp, dst):
    a = g.a
    for x in range(3):
        a(f"s_xor_b32 s{sT0}, s{sW}, {(x+1) << 1}\ns_mul_i32 s{sT0}, s{sT0}, 6144\ns_add_u32 s{sT0}, s{sT0}, {RB + x*2048}\nv_add_u32 v{tmp+x}, s{sT0}, v{vL16}")
    for x, src in ((1, ACC + 8), (0, ACC + 16), (2, ACC + 24)):
        a.ds(f"ds_write_b128 v{tmp+x}, {vr(src,4)}")
        a.ds(f"ds_write_b128 v{tmp+x}, {vr(src+4,4)} offset:1024")
    a(f"s_mul_i32 s{sT0}, s{sW}, 6144\ns_add_u32 s{sT0}, s{sT0}, {RB}\nv_add_u32 v{tmp+3}, s{sT0}, v{vL16}")
    a.wait_lg(None)
    a("s_barrier")
    for i in range(6): a.ds(f"ds_read_b128 {vr(dst+4*i,4)}, v{tmp+3} offset:{i*1024}", f"rd{i>>1}")
    for x in range(3):
        a.wait_lg(f"rd{x}")
        for i in range(4): a(f"v_pk_add_f32 {vr(ACC+2*i,2)}, {vr(ACC+2*i,2)}, {vr(dst+8*x+2*i,2)}")

def mod_piece(g, dst, tmp, ldsbase, s_extra=None):
    a = g.a
    a(f"v_lshrrev_b32 v5, 5, v{vL}\nv_lshlrev_b32 v5, 4, v5\ns_add_u32 s{sT0}, s{sCO}, {ldsbase}")
    if s_extra is not None: a(f"s_add_u32 s{sT0}, s{sT0}, s{s_extra}")
    a(f"v_add_u32 v5, s{sT0}, v5")
    a.ds(f"ds_read_b128 {vr(tmp,4)}, v5")
    a.wait_lg(None)
    g.unpack(dst, tmp, 4)

def p3(g, role):
    a = g.a
    vA0, vA1 = 3, 4
    GA, CBF = 48, 56
    FA = (64, 72)
    a(f"v_lshrrev_b32 v112, 5, v{vL}\nv_lshlrev_b32 v112, 4, v112\ns_add_u32 s{sT0}, s{sCO}, {MV2}\nv_add_u32 v113, s{sT0}, v112")
    a(f"s_lshl_b32 s{sT1}, s{sJ}, 7\ns_add_u32 s{sT1}, s{sT1}, s{sCO}\ns_add_u32 s{sT1}, s{sT1}, {MV + 1024}\nv_add_u32 v112, s{sT1}, v112")
    a(f"s_lshr_b32 s{sT1}, s{sW}, 1\ns_lshl_b32 s{sT2}, s{sT1}, 13\ns_and_b32 s{sT1}, s{sT1}, 1\ns_lshl_b32 s{sT1}, s{sT1}, 10\ns_add_u32 s{sT2}, s{sT2}, s{sT1}")
    a(f"v_add_u32 v{vA0}, s{sT2}, v{vL16}\nv_xor_b32 v{vA1}, 1024, v{vA0}")
    a(f"s_lshl_b32 s{sT2}, s{sW}, 13\ns_lshl_b32 s{sT3}, s{sR}, 16\ns_add_u32 s{sT3}, s{sT3}, s{sT2}\ns_add_u32 s{sT3}, s{sT3}, {OIMG}\ns_mov_b32 m0, s{sT2}")
    wait_flag(g, FLAG2, LFLAG2, "o")
    g.stamp(11)
    for m in range(4):
        if m == 2: a(f"s_add_u32 m0, s{sT2}, 4096\ns_add_u32 s{sT3}, s{sT3}, 4096")
        for t in range(2):
            a.vmem(f"buffer_load_dwordx4 v{vL16}, {sr(S_WS,4)}, s{sT3} offen offset:{(m&1)*2048+t*1024} sc1 lds", f"a{m}")
    if role == "M":
        for f in range(16): ld_b2(g, role, f)
    a(f"""s_and_b32 s{sT4}, s{sW}, 1
s_lshl_b32 s{sT4}, s{sT4}, 1
s_lshr_b32 s{sT1}, s{sW}, 2
s_add_u32 s{sT4}, s{sT4}, s{sT1}
s_lshl_b32 s{sT1}, s{sJ}, 2
s_add_u32 s{sT1}, s{sT1}, s{sT4}
s_lshl_b32 s{sT2}, s{sR}, 5
s_add_u32 s{sT1}, s{sT1}, s{sT2}
s_lshl_b32 s{sT1}, s{sT1}, 1
s_bfe_u32 s{sT2}, s{sW}, 0x10001
s_add_u32 s{sT1}, s{sT1}, s{sT2}
s_lshl_b32 s{sT1}, s{sT1}, 10
s_add_u32 s{sT1}, s{sT1}, {XIMG}
s_lshl_b32 s{sT4}, s{sT4}, 10
s_lshl_b32 s{sT2}, s{sT2}, 8
s_add_u32 s{sT4}, s{sT4}, s{sT2}
s_add_u32 s{sT4}, s{sT4}, {ST1}""")
    def rd(s):
        m, e = s >> 1, s & 1
        a.ds(f"ds_read_b128 {vr(FA[e],4)}, v{vA0} offset:{e*32768+m*2048}", f"f{s}")
        a.ds(f"ds_read_b128 {vr(FA[e]+4,4)}, v{vA1} offset:{e*32768+m*2048}", f"f{s}")
    def mf(s):
        e = s & 1
        a.wait_lg(f"f{s}")
        for t in range(2):
            c = "0" if s == 0 else vr(ACC + 16 * t, 16)
            a(f"v_mfma_f32_32x32x16_bf16 {vr(ACC+16*t,16)}, {vr(BO+4*s,4)}, {vr(FA[e]+4*t,4)}, {c}")
    for m in range(4):
        a.wait_vm(f"a{m}")
        a("s_barrier")
        rd(2 * m)
        if m: mf(2 * m - 1)
        if m == 0:
            a.ds(f"ds_read_b128 {vr(116,4)}, v113", "f1")
            a.ds(f"ds_read_b128 {vr(120,4)}, v112", "f1")
        rd(2 * m + 1)
        if m == 2: g.unpack(GA, 116, 4); g.unpack(CBF, 120, 4)
        if m == 0 and role == "M":
            Ls = a.newlabel("noep")
            a(f"s_add_u32 s{sT0}, s{sW}, s2\ns_cmp_lg_u32 s{sT0}, 0\ns_cbranch_scc1 {Ls}")
            a(f"v_mov_b32 v5, s{sTAG}\ns_mov_b64 exec, 1")
            a.vmem(f"buffer_store_dword v5, off, {sr(S_WS,4)}, 0 offset:{EPOCH} sc1", None, cond=True)
            a("s_mov_b64 exec, -1")
            a.label(Ls)
        mf(2 * m)
    mf(7)
    g.stamp(12)
    reduce4(g, RB3, 64, BO)
    for i in range(4): a(f"v_pk_fma_f32 {vr(X2+2*i,2)}, {vr(ACC+2*i,2)}, {vr(GA+2*i,2)}, {vr(X2+2*i,2)}")
    for i in range(4): a(f"v_pk_mul_f32 {vr(CBF+2*i,2)}, {vr(CBF+2*i,2)}, {vr(X2+2*i,2)}")
    for i in range(4): a(f"v_cvt_pk_bf16_f32 v{CBF+i}, v{CBF+2*i}, v{CBF+2*i+1}")
    a.vmem(f"buffer_store_dwordx4 {vr(CBF,4)}, v{vL16}, {sr(S_WS,4)}, s{sT1} offen sc1")
    T = GA
    a(f"v_pk_add_f32 {vr(T,2)}, {vr(X2,2)}, {vr(X2+2,2)}\nv_pk_mul_f32 {vr(T+2,2)}, {vr(X2,2)}, {vr(X2,2)}")
    a(f"v_pk_add_f32 {vr(T,2)}, {vr(T,2)}, {vr(X2+4,2)}\nv_pk_fma_f32 {vr(T+2,2)}, {vr(X2+2,2)}, {vr(X2+2,2)}, {vr(T+2,2)}")
    a(f"v_pk_add_f32 {vr(T,2)}, {vr(T,2)}, {vr(X2+6,2)}\nv_pk_fma_f32 {vr(T+2,2)}, {vr(X2+4,2)}, {vr(X2+4,2)}, {vr(T+2,2)}")
    a(f"v_add_f32 v{T}, v{T}, v{T+1}\nv_pk_fma_f32 {vr(T+2,2)}, {vr(X2+6,2)}, {vr(X2+6,2)}, {vr(T+2,2)}\nv_add_f32 v{T+1}, v{T+2}, v{T+3}")
    a(f"v_lshrrev_b32 v{T+2}, 5, v{vL}\nv_lshlrev_b32 v{T+2}, 8, v{T+2}\nv_lshl_add_u32 v{T+2}, v{vL}, 3, v{T+2}\nv_add_u32 v{T+2}, s{sT4}, v{T+2}")
    a.ds(f"ds_write_b64 v{T+2}, {vr(T,2)}")
    a.wait_lg(None)
    a("s_barrier")
    Ls = a.newlabel("nost")
    a(f"s_cmp_lg_u32 s{sW}, s{sJ}\ns_cbranch_scc1 {Ls}")
    a(f"v_lshlrev_b32 v{T+2}, 3, v{vL}\nv_add_u32 v{T+2}, {ST1}, v{T+2}")
    for i in range(8): a.ds(f"ds_read_b64 {vr(ACC+2*i,2)}, v{T+2} offset:{i*512}")
    a(f"s_lshl_b32 s{sT0}, s{sFP}, 3\ns_mov_b32 s{sT5}, s{sLP}\ns_add_u32 s{sT0}, s{sT0}, {STAT}")
    a.wait_lg(None)
    for i in range(1, 8): a(f"v_pk_add_f32 {vr(ACC,2)}, {vr(ACC,2)}, {vr(ACC+2*i,2)}")
    a(f"v_mov_b32 v{RC}, v{ACC}\nv_mov_b32 v{RC+2}, v{ACC+1}\nv_mov_b32 v{RC+1}, s{sTAG}\nv_mov_b32 v{RC+3}, s{sTAG}")
    a.label(Ls)
    ub_vectors(g, role, 0)
    a.wait_vm(None)
    a("s_barrier")
    Ls = a.newlabel("nost2")
    a(f"s_cmp_lg_u32 s{sW}, s{sJ}\ns_cbranch_scc1 {Ls}")
    a.vmem(f"buffer_store_dwordx4 {vr(RC,4)}, v{vL16}, {sr(S_WS,4)}, s{sT5} offen", None, cond=True)
    a.vmem(f"buffer_store_dwordx4 {vr(RC,4)}, v{vL16}, {sr(S_WS,4)}, s{sT0} offen sc1", None, cond=True)
    a("s_nop 1")
    a.label(Ls)
    g.stamp(13)
    ub_vectors(g, role, 1)

def p4(g, role):
    a = g.a
    nt = 2 if role == "H" else 1
    vA, vM = 3, 4
    FR = 64
    AL, BE = 96, 100
    a(f"v_lshrrev_b32 v5, 4, v{vL}\nv_lshrrev_b32 v{vA}, 5, v{vL}\nv_lshlrev_b32 v{vA}, 11, v{vA}\nv_and_b32 v5, 1, v5\nv_lshl_add_u32 v{vA}, v5, 9, v{vA}\nv_and_b32 v5, 15, v{vL}\nv_lshl_add_u32 v{vA}, v5, 4, v{vA}")
    a(f"s_lshl_b32 s{sT0}, s{sFW}, 3\ns_mov_b32 s{sT5}, s{sLW}\ns_add_u32 s{sT0}, s{sT0}, {STAT}")
    a(f"s_lshl_b32 s{sT2}, s{sW}, 13\ns_lshl_b32 s{sT3}, s{sR}, 16\ns_add_u32 s{sT3}, s{sT3}, s{sT2}\ns_add_u32 s{sT3}, s{sT3}, {XIMG}\ns_mov_b32 m0, s{sT2}")
    a(f"s_lshl_b32 s{sT1}, s{sW}, 9\ns_add_u32 s{sT1}, s{sT1}, {ST2}\nv_lshlrev_b32 v{vM}, 3, v{vL}\nv_add_u32 v48, s{sT1}, v{vM}\nv_add_u32 v{vM}, {ST2}, v{vM}")
    a(f"v_lshlrev_b32 v5, 2, v5")
    a(f"s_bfe_u32 s{sT1}, s{sW}, 0x10001\ns_lshl_b32 s{sT1}, s{sT1}, 7\nv_and_b32 v49, 31, v{vL}\nv_lshlrev_b32 v49, 2, v49\nv_add_u32 v49, s{sT1}, v49")
    Ls = a.newlabel("ownst")
    a(f"s_cmp_eq_u32 s{sW}, s{sJ}\ns_cbranch_scc1 {Ls}")
    assert all(e[1] for e in a.vm), a.vm
    poll2(g, lambda s: f"buffer_load_dwordx4 {vr(RC,4)}, v{vL16}, {sr(S_WS,4)}, s{s} offen sc1", sT5, sT0, [RC + 1, RC + 3], "st")
    a.label(Ls)
    g.stamp(14)
    for m in range(4):
        if m == 2: a(f"s_add_u32 m0, s{sT2}, 4096\ns_add_u32 s{sT3}, s{sT3}, 4096")
        for t in range(2):
            a.vmem(f"buffer_load_dwordx4 v{vL16}, {sr(S_WS,4)}, s{sT3} offen offset:{(m&1)*2048+t*1024} sc1 lds", f"a{m>>1}")
    a.ds(f"ds_write2_b32 v48, v{RC}, v{RC+2} offset0:0 offset1:1")
    a.wait_lg(None)
    a("s_barrier")
    for i in range(8): a.ds(f"ds_read_b64 {vr(FR+2*i,2)}, v{vM} offset:{i*512}")
    a(f"v_cmp_gt_u32 vcc, 32, v5")
    a.wait_lg(None)
    for d, s in ((0, 1), (2, 3), (4, 5), (6, 7), (0, 2), (4, 6), (0, 4)):
        a(f"v_pk_add_f32 {vr(FR+2*d,2)}, {vr(FR+2*d,2)}, {vr(FR+2*s,2)}")
    a(f"v_mul_f32 v{FR}, {hex(f2u(-1/512))}, v{FR}\nv_mul_f32 v{FR+1}, {hex(f2u(1/512))}, v{FR+1}")
    a(f"v_fma_f32 v{FR+1}, -v{FR}, v{FR}, v{FR+1}\nv_max_f32 v{FR+1}, 0, v{FR+1}\nv_add_f32 v{FR+1}, {hex(f2u(1e-5))}, v{FR+1}")
    a(f"v_rsq_f32 v{FR+2}, v{FR+1}\nv_mul_f32 v{FR+1}, v{FR+1}, v{FR+2}")
    a(f"v_cndmask_b32 v{FR+3}, v{FR+1}, v{FR}, vcc\nv_cndmask_b32 v{FR+4}, v{FR}, v{FR+1}, vcc")
    for t in range(4):
        a.ds(f"ds_bpermute_b32 v{AL+t}, v5, v{FR+3} offset:{t*64}")
        a.ds(f"ds_bpermute_b32 v{BE+t}, v5, v{FR+4} offset:{t*64}")
    a.ds(f"ds_bpermute_b32 v{RSTD}, v49, v{FR+2}")
    a.wait_lg(None)
    order = P4_ORDER
    def reads(n):
        ks = order[n]; f = FR + 16 * (n & 1)
        for t in range(4): a.ds(f"ds_read_b128 {vr(f+4*t,4)}, v{vA} offset:{ks*4096+(t>>1)*1024+(t&1)*256}", f"f{n}")
    a.wait_vm("a0")
    a("s_barrier")
    g.stamp(15)
    reads(0)
    for ct in range(nt):
        for t in range(4):
            d = ACC + 16 * ct + 4 * t
            ps = AL + (t & ~1); pb = BE + (t & ~1); sel = t & 1
            for i in range(2):
                a(f"v_pk_mul_f32 {vr(d+2*i,2)}, {vr(UX+4*ct+2*i,2)}, {vr(ps,2)} op_sel:[0,{sel}] op_sel_hi:[1,{sel}]")
            for i in range(2):
                a(f"v_pk_fma_f32 {vr(d+2*i,2)}, {vr(UY+4*ct+2*i,2)}, {vr(pb,2)}, {vr(d+2*i,2)} op_sel:[0,{sel},0] op_sel_hi:[1,{sel},1]")
    if role == "H": a("s_setprio 1")
    for n in range(16):
        if n + 1 == 8:
            a.wait_vm("a1")
            a("s_barrier")
        if n + 1 < 16: reads(n + 1)
        a.wait_lg(f"f{n}")
        ks = order[n]; f = FR + 16 * (n & 1)
        for t in range(4):
            for ct in range(nt):
                d = ACC + 16 * ct + 4 * t
                a(f"v_mfma_f32_16x16x32_bf16 {vr(d,4)}, {vr(B1+64*ct+4*ks,4)}, {vr(f+4*t,4)}, {vr(d,4)}")
        if role == "H" and n < 11: ld_b2(g, role, 2 * n); ld_b2(g, role, 2 * n + 1)
        if role == "M" and n < 6: ld_b2(g, role, 16 + n)
    g.stamp(16)
    a(f"s_mul_i32 s{sT0}, s{sR}, {88*2048}\ns_lshl_b32 s{sT1}, s{sB1}, 11\ns_add_u32 s{sT0}, s{sT0}, s{sT1}\ns_add_u32 s{sT0}, s{sT0}, {HIMG}\ns_add_u32 s{sT1}, s{sT0}, 8192")
    Ls = a.newlabel("nohid")
    if role == "M": a(f"s_cmp_eq_u32 s{sW}, 3\ns_cbranch_scc1 {Ls}")
    for t32 in range(2):
        for ct in range(nt):
            d = ACC + 16 * ct + 8 * t32
            p = 48 + 8 * ct + 4 * t32
            for i in range(4): a(f"v_cvt_pk_bf16_f32 v{p+i}, v{d+2*i}, v{d+2*i+1}")
            for i in (0, 2, 1, 3): a(f"v_pk_max_i16 v{p+i}, v{p+i}, 0")
            a(f"v_permlane16_swap_b32 v{p}, v{p+2}\nv_permlane16_swap_b32 v{p+1}, v{p+3}")
            a.vmem(f"buffer_store_dwordx4 {vr(p,4)}, v{vL16}, {sr(S_WS,4)}, s{sT1 if ct else sT0} offen offset:{t32*1024} sc1", "hs", cond=(role == "M"))
    if role == "M": a.label(Ls)
    if role == "H": a("s_setprio 0")
    a.wait_vm(None)
    a("s_barrier")
    post_flag(g, role, FLAG4, LFLAG4)
    g.stamp(17)

def p5(g, role):
    a = g.a
    vA = 56
    GB = 48; FA = (64, 72, 80, 88)
    mod_piece(g, GB, 64, MV2 + 128)
    for i in range(8): a(f"v_mul_f32 v{GB+i}, v{GB+i}, v{RSTD}")
    a(f"s_lshr_b32 s{sT1}, s{sW}, 1\ns_lshl_b32 s{sT2}, s{sT1}, 11\ns_and_b32 s{sT1}, s{sT1}, 1\ns_lshl_b32 s{sT1}, s{sT1}, 10\ns_add_u32 s{sT2}, s{sT2}, s{sT1}")
    a(f"v_add_u32 v{vA}, s{sT2}, v{vL16}\nv_xor_b32 v{vA+1}, 1024, v{vA}")
    for k in (1, 2):
        a(f"v_add_u32 v{vA+2*k}, {k*65536}, v{vA}\nv_add_u32 v{vA+2*k+1}, {k*65536}, v{vA+1}")
    a(f"s_lshl_b32 s{sT2}, s{sW}, 11\ns_mul_i32 s{sT3}, s{sR}, {88*2048}\ns_mul_i32 s{sT1}, s{sW}, {11*2048}\ns_add_u32 s{sT3}, s{sT3}, s{sT1}\ns_add_u32 s{sT3}, s{sT3}, {HIMG}")
    wait_flag(g, FLAG4, LFLAG4, "h")
    g.stamp(18)
    def dma(m):
        a(f"s_add_u32 m0, s{sT2}, {(m % 9) * 16384}")
        if m: a(f"s_add_u32 s{sT3}, s{sT3}, 2048")
        for t in range(2):
            a.vmem(f"buffer_load_dwordx4 v{vL16}, {sr(S_WS,4)}, s{sT3} offen offset:{t*1024} sc1 lds", f"a{m}")
    for m in range(9): dma(m)
    def rd(m, e):
        f = FA[2 * (m & 1) + e]
        off = (m % 9) * 16384 + e * 8192
        k = off >> 16; off &= 65535
        a.ds(f"ds_read_b128 {vr(f,4)}, v{vA+2*k} offset:{off}", f"f{m}")
        a.ds(f"ds_read_b128 {vr(f+4,4)}, v{vA+2*k+1} offset:{off}", f"f{m}")
    def mf(m, e, t):
        f = FA[2 * (m & 1) + e]
        c = "0" if (m == 0 and e == 0) else vr(ACC + 16 * t, 16)
        a(f"v_mfma_f32_32x32x16_bf16 {vr(ACC+16*t,16)}, {vr(b2reg(role,2*m+e),4)}, {vr(f+4*t,4)}, {c}")
    for m in range(12):
        if m < 11:
            a.wait_vm(f"a{m}")
            a("s_barrier")
        if m:
            a.wait_lg(f"f{m-1}")
            mf(m - 1, 0, 0)
        if m < 11: rd(m, 0)
        if m: mf(m - 1, 0, 1)
        if m < 11: rd(m, 1)
        if m: mf(m - 1, 1, 0)
        if m in (2, 3): dma(m + 7)
        if m: mf(m - 1, 1, 1)
    g.stamp(19)
    reduce4(g, RB5, 96, 64)
    for i in range(4): a(f"v_pk_fma_f32 {vr(X2+2*i,2)}, {vr(ACC+2*i,2)}, {vr(GB+2*i,2)}, {vr(X2+2*i,2)}")
    for i in range(4): a(f"v_cvt_pk_bf16_f32 v{X2+i}, v{X2+2*i}, v{X2+2*i+1}")
    a.vmem(f"buffer_store_dwordx4 {vr(X2,4)}, v{vXoff}, {sr(S_OUT,4)}, s{sXO} offen{' sc1' if g.opts.get('outsc1') else ''}")
    g.stamp(20)
```

```python
import sys, math
from dsl import *

KNAME = "adaLN_cond__softmax_full_mha__dense_activation_relu__prompt_kernel"

EPOCH  = 0
FLAG2  = 0x8000
FLAG4  = 0x10000
FLAG1  = 0x20000
STAT   = 0x40000
WOI    = 0x80000
KV     = 0x100000
OIMG   = 0x500000
XIMG   = 0x700000
HIMG   = 0x900000
W1I    = 0xE80000
W2I    = 0xFE0000
MODP   = 0x1140000
LREC   = 0x1158000
LFLAG1 = 0x11A8000
FLAG1B = 0x18000
WSEND  = 0x11C8000
LOG    = 0x1200000
WSSIZE = 0x1400000

WRING = 65536
SLOT  = 24576
QX    = WRING + SLOT
CB    = 40960
RLST  = WRING
RLCNT = WRING + 16384
VRING = 98304
RB3   = 65536
RB5   = 32768
MODL  = 57344
XPL   = 16384
MV    = 147456
ST1   = MV + 2048
ST2   = ST1 + 4096
MV2   = ST2 + 4096
LDSSZ = 163840

S_WS, S_X, S_WQ, S_WM, S_C, S_RL, S_OUT = 4, 8, 12, 16, 20, 24, 28
S_PWO, S_PW1, S_PW2 = 32, 36, 38
sW, sXCD, sI, sR, sJ, sTAG = 40, 41, 42, 43, 44, 45
sT0, sT1, sT2, sT3, sT4, sT5, sCNT = 46, 47, 48, 49, 50, 51, 52
sVM = 54
sKVB, sKVO = 56, 57
sB1, sB1b = 58, 59
sU0, sU1, sU2, sU3 = 60, 61, 62, 63
sTB = 3
sROT = 53
sLN = 64
sST = 96
sPM = 98
RLS = [sLN + 8 + k for k in range(9)]
RLV, RLT = 128, 136
import os
POLL_LIMIT = int(os.environ.get('POLL_LIMIT', 400000))

LOG2E = 1.4426950408889634
def f2u(x):
    import struct
    return struct.unpack("<I", struct.pack("<f", x))[0]

class Gen:
    def __init__(self, stamps=False, stop_after=None, force_slow=False, opts=None):
        self.opts = opts or {}
        self.early_w = int(self.opts.get("early_w", 3))
        self.prefetch = int(self.opts.get("prefetch", 1))
        self.nt = " nt" if self.opts.get("nt", "1") == "1" else ""
        self.ntx = " nt" if self.opts.get("ntx", "1") == "1" else ""
        self.a = Asm()
        self.stamps = stamps
        self.stop_after = stop_after
        self.force_slow = force_slow
        self.nstamp = 0

    def stamp(self, idx):
        echo = self.opts.get("echo")
        if echo:
            lo, hi = map(int, echo.split("-"))
            if idx in (lo, hi):
                self.a(f"s_memrealtime {sr(sST,2)}")
                self.a("s_waitcnt lgkmcnt(0)"); self.a.lg = []
                self.a(f"s_mov_b32 s{100 if idx == lo else 101}, s{sST}")
        if not self.stamps: return
        a = self.a
        a(f"s_memtime {sr(sST,2)}\ns_memrealtime s[100:101]")
        a("s_waitcnt lgkmcnt(0)"); a.lg = []
        a(f"v_writelane_b32 v{self.vstamp}, s{sST}, {idx}\nv_writelane_b32 v{self.vstamp}, s100, {idx+32}")

    def flush_stamps(self):
        if not self.stamps: return
        a = self.a
        a(f"s_lshl_b32 s{sT0}, s2, 3\ns_add_u32 s{sT0}, s{sT0}, s{sW}\ns_lshl_b32 s{sT0}, s{sT0}, 8\ns_add_u32 s{sT0}, s{sT0}, {LOG}")
        a(f"v_lshlrev_b32 v4, 2, v0")
        a.vmem(f"buffer_store_dword v{self.vstamp}, v4, {sr(S_WS,4)}, s{sT0} offen")

    def poll(self, loads, cmps, name):
        a = self.a
        L = a.newlabel("poll_" + name); Ld = a.newlabel("pdone_" + name)
        a(f"s_mov_b32 s{sCNT}, {POLL_LIMIT}")
        a.label(L)
        for ld in loads: a(ld)
        a(f"s_sub_u32 s{sCNT}, s{sCNT}, 1\ns_cmp_eq_u32 s{sCNT}, 0")
        a("s_waitcnt vmcnt(0)"); a.vm = []
        a(f"s_cbranch_scc1 {Ld}")
        for n, v in enumerate(cmps):
            if n == 0: a(f"v_cmp_ne_u32 vcc, s{sTAG}, v{v}")
            else:
                a(f"v_cmp_ne_u32 {sr(sPM,2)}, v{v}, s{sTAG}")
                a(f"s_or_b64 vcc, vcc, {sr(sPM,2)}")
        a("s_nop 0")
        a(f"s_cbranch_vccnz {L}")
        a.label(Ld)

    def unpack(self, dst, src, n):
        a = self.a
        for i in range(n):
            a(f"v_and_b32 v{dst+2*i+1}, 0xffff0000, v{src+i}")
            a(f"v_lshlrev_b32 v{dst+2*i}, 16, v{src+i}")

    def swap23(self, dst, src, tmp):
        a = self.a
        a(f"v_and_b32 v{tmp}, 4, v{src}\nv_lshlrev_b32 v{tmp}, 1, v{tmp}")
        a(f"v_and_b32 v{dst}, 0xfffffff3, v{src}") if dst != src else None
        assert dst != src
        a(f"v_or_b32 v{dst}, v{dst}, v{tmp}")
        a(f"v_and_b32 v{tmp}, 8, v{src}\nv_lshrrev_b32 v{tmp}, 1, v{tmp}\nv_or_b32 v{dst}, v{dst}, v{tmp}")

    def gemv_issue(self, base, s_lc, s_dst, first=False, cond=False):
        a = self.a
        vC, vOff = base, base + 1
        a(f"s_lshl_b32 s{s_dst}, s{s_lc}, 8\ns_mul_i32 s{sT4}, s{sXCD}, 12288\ns_add_u32 s{s_dst}, s{s_dst}, s{sT4}\ns_add_u32 s{s_dst}, s{s_dst}, {MODP}")
        a(f"s_lshl_b32 s{s_lc}, s{s_lc}, 7\ns_mul_i32 s{sT4}, s{sXCD}, {64*6144}\ns_add_u32 s{s_lc}, s{s_lc}, s{sT4}\ns_lshl_b32 s{sT4}, s{sXCD}, 7")
        self.dma_lane_off(vOff, 0, base + 2, base + 3, 6144)
        a(f"v_lshlrev_b32 v{base+2}, 1, v0\ns_mov_b32 m0, 0")
        if first: self.kernarg_wait()
        a.vmem(f"buffer_load_ushort v{vC}, v{base+2}, {sr(S_C,4)}, s{sT4} offen", "gc", cond)
        for o in range(8 if first else 1): self.gemv_octet(base, s_lc, o, cond)
    def gemv_octet(self, base, s_lc, o, cond=False):
        a = self.a
        if o: a(f"s_mov_b32 m0, {o*1024}\ns_add_u32 s{s_lc}, s{s_lc}, {8*6144}")
        a.vmem(f"buffer_load_dwordx4 v{base+1}, {sr(S_WM,4)}, s{s_lc} offen{self.nt} lds", "gw", cond)
    def gemv_finish(self, base, s_dst, cond=False):
        a = self.a
        vC, vT, vA, vB = base, base + 1, base + 3, base + 2
        S, W = base + 4, base + 12
        D = base + 44
        a(f"v_lshrrev_b32 v{vT}, 4, v0\nv_lshlrev_b32 v{vA}, 10, v{vT}\nv_lshlrev_b32 v{D}, 4, v{vT}")
        a(f"v_bfe_u32 v{vT}, v0, 2, 2\nv_lshl_add_u32 v{vA}, v{vT}, 6, v{vA}\nv_lshl_add_u32 v{D+1}, v{vT}, 6, v{D}")
        a(f"v_and_b32 v{vT}, 3, v0\nv_lshl_add_u32 v{vA}, v{vT}, 3, v{vA}")
        a.wait_vm("gc")
        a(f"v_lshlrev_b32 v{vC}, 16, v{vC}\nv_mul_f32 v{vT}, {hex(f2u(-LOG2E))}, v{vC}\nv_exp_f32 v{vT}, v{vT}\nv_add_f32 v{vT}, 1.0, v{vT}")
        a(f"v_rcp_f32 v{vT}, v{vT}\nv_mul_f32 v{vC}, v{vC}, v{vT}\nv_cvt_pk_bf16_f32 v{vC}, v{vC}, v{vC}")
        a.ds(f"ds_write_b16 v{vB}, v{vC} offset:8192")
        a.ds(f"ds_read_b128 {vr(S,4)}, v{D} offset:8192")
        a.ds(f"ds_read_b128 {vr(S+4,4)}, v{D} offset:8256")
        a(f"v_mov_b32 v{vB}, v{D+1}\nv_mov_b32 v{vT}, 0xff")
        a.wait_vm("gw")
        for ct in range(4):
            for ks in range(2):
                for kq in range(2):
                    a.ds(f"ds_read_b64_tr_b16 {vr(W+8*ct+4*ks+2*kq,2)}, v{vA} offset:{ks*4096+kq*512+(ct>>1)*256+(ct&1)*32}", f"gt{ct}")
        acc = [D, S + 0, W + 0, W + 8]
        acc = [D, W + 0, W + 8, W + 16]
        for ct in range(4):
            a.wait_lg(f"gt{ct}")
            a(f"v_mfma_f32_16x16x32_bf16 {vr(acc[ct],4)}, {vr(W+8*ct,4)}, {vr(S,4)}, 0")
            a(f"v_mfma_f32_16x16x32_bf16 {vr(acc[ct],4)}, {vr(W+8*ct+4,4)}, {vr(S+4,4)}, {vr(acc[ct],4)}")
        for ct in range(1, 4):
            for r in range(4):
                a(f"v_mov_b32_dpp v{D+r}, v{acc[ct]+r} quad_perm:[0,1,2,3] row_mask:0xf bank_mask:{hex(1 << ct)}")
        a(f"v_bfi_b32 v{D+1}, v{vT}, s{sTAG}, v{D+1}\nv_bfi_b32 v{D+3}, v{vT}, s{sTAG}, v{D+3}")
        a(f"s_mov_b32 exec_lo, 0x11111111\ns_mov_b32 exec_hi, 0x11111111")
        a.vmem(f"buffer_store_dwordx4 {vr(D,4)}, v{vB}, {sr(S_WS,4)}, s{s_dst} offen sc1", "mst", cond)
        a("s_mov_b64 exec, -1")

    def gather_issue(self, base, vOff, s_base, cond=False):
        a = self.a
        a(f"s_mov_b32 s{sT4}, s{s_base}")
        for p in range(8):
            a.vmem(f"buffer_load_dwordx4 {vr(base+4*p,4)}, v{vOff}, {sr(S_WS,4)}, s{sT4} offen sc1", f"p{p}", cond)
            if p < 7: a(f"s_add_u32 s{sT4}, s{sT4}, 12288")
    def gather_finish(self, base, vOff, s_base, s_add, name, pk=True):
        a = self.a
        L = a.newlabel("g_" + name); Ld = a.newlabel("gd_" + name)
        a(f"s_mov_b32 s{sCNT}, {POLL_LIMIT}")
        a.label(L)
        chk = base + 32
        for p in range(8):
            a.wait_vm(f"p{p}")
            r = base + 4 * p
            a(f"v_xor_b32 v{r+1}, s{sTB}, v{r+1}\nv_xor_b32 v{r+3}, s{sTB}, v{r+3}")
            if p == 0: a(f"v_or_b32 v{chk}, v{r+1}, v{r+3}")
            else:
                a(f"v_or3_b32 v{chk}, v{chk}, v{r+1}, v{r+3}")
                if pk: a(f"v_pk_add_f32 {vr(base,2)}, {vr(base,2)}, {vr(r,2)}\nv_pk_add_f32 {vr(base+2,2)}, {vr(base+2,2)}, {vr(r+2,2)}")
                else:
                    for i in range(4): a(f"v_add_f32 v{base+i}, v{base+i}, v{r+i}")
        a(f"v_and_b32 v{chk}, 0xff, v{chk}\nv_cmp_ne_u32 vcc, 0, v{chk}")
        a(f"s_sub_u32 s{sCNT}, s{sCNT}, 1\ns_cmp_eq_u32 s{sCNT}, 0\ns_cbranch_scc1 {Ld}")
        a(f"s_cbranch_vccz {Ld}")
        st = a.save()
        self.gather_issue(base, vOff, s_base)
        a("s_waitcnt vmcnt(0)")
        a(f"s_branch {L}")
        a.restore(st)
        a.label(Ld)
        a(f"v_cvt_pk_bf16_f32 v{base+4}, v{base}, v{base+1}\nv_cvt_pk_bf16_f32 v{base+5}, v{base+2}, v{base+3}")
        if s_add is not None:
            self.unpack(base, base + 4, 2)
            for i in range(4): a(f"v_add_f32 v{base+i}, s{s_add}, v{base+i}")
            a(f"v_cvt_pk_bf16_f32 v{base+4}, v{base}, v{base+1}\nv_cvt_pk_bf16_f32 v{base+5}, v{base+2}, v{base+3}")

    def wdma_pre(self, n):
        self.a(f"s_add_u32 s{sT0}, s{sROT}, {n}\ns_and_b32 s{sT0}, s{sT0}, 7\ns_mul_i32 s{sT0}, s{sT0}, {64*3072}\ns_add_u32 s{sT0}, s{sT0}, s{sU0}")
        self.a(f"s_add_u32 m0, s{sU1}, {WRING + (n & 3) * SLOT}")
    def wdma_one(self, n, kind):
        self.a.vmem(f"buffer_load_dwordx4 v3, {sr(S_WQ,4)}, s{sT0} offen offset:{kind*1024} lds", f"w{n}")
    def wdma(self, n):
        self.wdma_pre(n)
        for kind in range(3): self.wdma_one(n, kind)

    def dma_lane_off(self, dst, vL, t0, t1, pitch):
        a = self.a
        a(f"v_lshrrev_b32 v{t0}, 5, v{vL}\nv_bfe_u32 v{t1}, v{vL}, 2, 2\nv_lshl_add_u32 v{t0}, v{t0}, 2, v{t1}")
        a(f"v_mul_u32_u24 v{dst}, {pitch}, v{t0}")
        a(f"v_bfe_u32 v{t0}, v{vL}, 4, 1\nv_lshl_add_u32 v{dst}, v{t0}, 6, v{dst}")
        a(f"v_and_b32 v{t0}, 3, v{vL}\nv_lshl_add_u32 v{dst}, v{t0}, 4, v{dst}")

    def prologue(self):
        a = self.a
        a(f"s_cmp_ge_u32 s2, 256\ns_cbranch_scc1 L_exit")
        a(f"""s_load_dwordx2 {sr(S_WM,2)}, s[0:1], 56
s_load_dwordx2 {sr(S_C,2)}, s[0:1], 48
s_load_dwordx2 {sr(S_WS,2)}, s[0:1], 80
s_load_dwordx2 {sr(S_X,2)}, s[0:1], 0
s_load_dwordx2 {sr(S_WQ,2)}, s[0:1], 8
s_load_dwordx2 {sr(S_OUT,2)}, s[0:1], 64
s_load_dwordx2 {sr(S_PWO,2)}, s[0:1], 16
s_load_dwordx4 {sr(S_PW1,4)}, s[0:1], 32""")
        a(f"v_lshrrev_b32 v1, 6, v0\nv_and_b32 v0, 63, v0\nv_readfirstlane_b32 s{sW}, v1\nv_lshlrev_b32 v2, 4, v0")
        for s, n in ((S_WS, WSSIZE if self.stamps else WSEND), (S_X, 2097152), (S_WQ, 1572864), (S_WM, 3145728), (S_C, 1024), (S_OUT, 2097152)):
            a(f"s_mov_b32 s{s+2}, {n}\ns_mov_b32 s{s+3}, 0x20000")
        a(f"""s_and_b32 s{sXCD}, s2, 7
s_lshr_b32 s{sI}, s2, 3
s_lshr_b32 s{sT0}, s{sI}, 3
s_lshl_b32 s{sR}, s{sXCD}, 2
s_add_u32 s{sR}, s{sR}, s{sT0}
s_add_u32 s{sJ}, s{sI}, {int(self.opts.get('joff', 0))}
s_and_b32 s{sJ}, s{sJ}, 7
s_add_u32 s{sROT}, s{sJ}, s{sXCD}
s_mov_b32 s{sVM}, 0xffff
s_mov_b32 s{sVM+1}, 0xffff
s_mul_i32 s{sU0}, s{sW}, {8*3072}
s_lshl_b32 s{sT1}, s{sJ}, 7
s_add_u32 s{sU0}, s{sU0}, s{sT1}
s_mul_i32 s{sU1}, s{sW}, 3072
s_and_b32 s{sT0}, s{sW}, 1
s_lshl_b32 s{sT0}, s{sT0}, 5""")
        self.dma_lane_off(3, 0, 4, 5, 3072)
        a(f"v_xor_b32 v3, s{sT0}, v3")
        a(f"s_cmp_ge_u32 s{sW}, 4\ns_cbranch_scc1 L_H")

    def kernarg_wait(self):
        self.a("s_waitcnt lgkmcnt(0)")
        self.a(f"s_load_dword s{sTAG}, {sr(S_WS,2)}, {EPOCH}")

    def get_tag(self):
        self.a("s_waitcnt lgkmcnt(0)"); self.a.lg = []
        self.a(f"s_add_u32 s{sTAG}, s{sTAG}, 0x9e3779b9\ns_and_b32 s{sTB}, s{sTAG}, 0xff")

    def p1_M(self):
        a = self.a
        vL, vL16 = 0, 2
        G = 192
        Lno = a.newlabel("nomod1")
        a(f"s_lshl_b32 s{sT0}, s{sW}, 5\ns_add_u32 s{sU2}, s{sT0}, s{sI}\ns_cmp_ge_u32 s{sU2}, 16\ns_cbranch_scc1 {Lno}")
        st = a.save()
        self.gemv_issue(G, sU2, sU3, first=True)
        if self.opts.get("preinst", "1") == "1":
            a(f"v_lshlrev_b32 v5, 2, v0")
            a.vmem(f"buffer_load_dword v7, v5, {sr(S_WS,4)}, s{sU3} offen sc1")
        self.wdma(0)
        self.get_tag()
        self.gemv_finish(G, sU3)
        Lj = a.newlabel("join1")
        a(f"s_branch {Lj}")
        a.label(Lno)
        a.restore(st)
        self.kernarg_wait()
        self.wdma(0)
        self.code_prefetch(G)
        self.get_tag()
        a.wait_vm(None)
        a.label(Lj)
        a.vm = [("old", False)]
        for n in range(1, 1 + self.early_w): self.wdma(n)
        vA, vW0, vW1, vVst, vQ = 16, 18, 19, 20, 21
        t0, t1, t2 = 4, 5, 6
        a(f"v_and_b32 v{t0}, 15, v{vL}\nv_lshrrev_b32 v{t1}, 4, v{vL}\nv_lshrrev_b32 v{t2}, 1, v{t0}\nv_xor_b32 v{t2}, v{t2}, v{t1}\nv_lshlrev_b32 v{t2}, 4, v{t2}")
        a(f"v_lshl_add_u32 v{vA}, v{t0}, 7, v{t2}\nv_xor_b32 v{vA+1}, 64, v{vA}")
        a(f"v_mul_u32_u24 v{vW0}, 3072, v{t1}\nv_bfe_u32 v{t2}, v{vL}, 2, 2\nv_lshl_add_u32 v{vW0}, v{t2}, 6, v{vW0}")
        a(f"v_xor_b32 v{t2}, s{sW}, v{t1}\nv_and_b32 v{t2}, 1, v{t2}\nv_lshl_add_u32 v{vW0}, v{t2}, 5, v{vW0}\nv_and_b32 v{t2}, 3, v{vL}\nv_lshl_add_u32 v{vW0}, v{t2}, 3, v{vW0}")
        a(f"s_lshr_b32 s{sT3}, s{sW}, 1\ns_lshl_b32 s{sT3}, s{sT3}, 8\ns_add_u32 s{sT3}, s{sT3}, {WRING}\nv_add_u32 v{vW0}, s{sT3}, v{vW0}\nv_add_u32 v{vW1}, {2*SLOT}, v{vW0}")
        self.swap23(vVst, t0, t2)
        a(f"v_lshlrev_b32 v{vVst}, 4, v{vVst}\nv_and_b32 v{t2}, 1, v{t1}\nv_lshl_add_u32 v{vVst}, v{t2}, 9, v{vVst}\nv_lshrrev_b32 v{t2}, 1, v{t1}\nv_lshl_add_u32 v{vVst}, v{t2}, 8, v{vVst}")
        a(f"s_lshl_b32 s{sT3}, s{sW}, 11\ns_add_u32 s{sT3}, s{sT3}, {QX}\nv_add_u32 v{vQ}, s{sT3}, v{vL16}")
        a(f"s_lshl_b32 s{sU2}, s{sJ}, 2\ns_add_u32 s{sU2}, s{sU2}, s{sW}\ns_lshl_b32 s{sU2}, s{sU2}, 17\ns_lshl_b32 s{sT3}, s{sR}, 12\ns_add_u32 s{sU2}, s{sU2}, s{sT3}\ns_add_u32 s{sU2}, s{sU2}, {KV}")
        ACC = 24
        FA = (72, 88)
        FW = (104, 116)
        PARK = 128
        NPARK = 0
        def wreg(step): return PARK + 12 * step if step < NPARK else FW[step & 1]
        def rdW(step, lo=0, hi=6, tag=None):
            n, ks = step >> 1, step & 1
            vb = vW0 if (n & 3) < 2 else vW1
            for i in range(lo, hi):
                kind, kq = divmod(i, 2)
                off = (n & 1) * SLOT + ks * 12288 + kind * 1024 + kq * 512
                a.ds(f"ds_read_b64_tr_b16 {vr(wreg(step)+4*kind+2*kq,2)}, v{vb} offset:{off}", tag or f"f{step}")
        def rdA(step, t):
            n, ks = step >> 1, step & 1
            a.ds(f"ds_read_b128 {vr(FA[step&1]+4*t,4)}, v{vA+ks} offset:{n*8192+t*2048}", f"f{step}")
        def mf(step, t, kind):
            d = ACC + 16 * kind + 4 * t
            c = "0" if step == 0 else vr(d, 4)
            w_, h_ = vr(wreg(step) + 4 * kind, 4), vr(FA[step & 1] + 4 * t, 4)
            A, B = (w_, h_) if kind < 2 else (h_, w_)
            a(f"v_mfma_f32_16x16x32_bf16 {vr(d,4)}, {A}, {B}, {c}")
        a(f"s_lshl_b32 s{sT1}, s{sW}, 10\ns_add_u32 s{sT2}, s{sT1}, {MODP}\ns_cmp_ge_u32 s{sW}, 2\ns_cselect_b32 s{sT3}, 1.0, 0")
        a(f"v_add_u32 v4, s{sT1}, v{vL16}")
        a.wait_vm("old")
        self.stamp(1)
        a("s_barrier")
        self.stamp(6)
        self.gather_issue(G, vL16, sT2)
        a("s_barrier")
        self.gather_finish(G, vL16, sT2, sT3, "m1")
        self.unpack(G, G + 4, 2)
        a.ds(f"ds_write_b128 v4, {vr(G,4)} offset:{MODL}")
        a.wait_lg(None)
        a("s_barrier")
        self.stamp(5)
        for n in range(1 + self.early_w, 4): self.wdma(n)
        rdW(0)
        a("s_barrier")
        self.stamp(2)
        for t in range(4): rdA(0, t)
        for step in range(16):
            nxt = step + 1
            a.wait_lg(None)
            slots = [[] for _ in range(12)]
            if nxt < 16:
                ops = [lambda t=t: rdA(nxt, t) for t in range(4)]
                ops = [lambda: rdW(nxt, 0, 1), lambda: rdW(nxt, 1, 2)] + ops[:1] + [lambda i=i: rdW(nxt, i, i + 1) for i in range(2, 6)] + ops[1:]
                for k, op in enumerate(ops): slots[(k * 7) // 10].append(op)
            c = (nxt >> 1) + 3
            if (nxt & 1) == 0 and c < 8:
                slots[7].append(lambda: self.wdma_pre(c))
                for kind in range(3): slots[8 + kind].append(lambda kind=kind: self.wdma_one(c, kind))
            k = 0
            for t in range(4):
                for kind in range(3):
                    mf(step, t, kind)
                    if k == 0 and nxt < 16 and (nxt & 1) == 0:
                        a.wait_vm(f"w{nxt >> 1}")
                        a("s_barrier")
                    for op in slots[k]: op()
                    k += 1
            if self.opts.get("lstamp") and step in (1, 3, 5, 7, 9, 11, 13): self.stamp(24 + step // 2)
        self.stamp(3)
        PK = 72
        def pack(kind, t32, p):
            d = ACC + 16 * kind + 8 * t32
            for i in (0, 2, 1, 3): a(f"v_cvt_pk_bf16_f32 v{p+i}, v{d+2*i}, v{d+2*i+1}")
            a(f"v_permlane16_swap_b32 v{p}, v{p+2}\nv_permlane16_swap_b32 v{p+1}, v{p+3}")
        for t32 in range(2):
            pack(1, t32, PK + 8 * t32)
            a.vmem(f"buffer_store_dwordx4 {vr(PK+8*t32,4)}, v{vL16}, {sr(S_WS,4)}, s{sU2} offen offset:{t32*2048} sc1", "kv")
            pack(2, t32, PK + 8 * t32 + 4)
            a.vmem(f"buffer_store_dwordx4 {vr(PK+8*t32+4,4)}, v{vVst}, {sr(S_WS,4)}, s{sU2} offen offset:{t32*2048+1024} sc1", "kv")
        a(f"s_mov_b32 s{sT0}, {hex(f2u(0.25*LOG2E))}")
        for i in range(16): a(f"v_mul_f32 v{ACC+i}, s{sT0}, v{ACC+i}")
        for t32 in range(2):
            pack(0, t32, 8 + 4 * t32)
            a.ds(f"ds_write_b128 v{vQ}, {vr(8+4*t32,4)} offset:{t32*1024}")
        a.wait_lg(None)
        a("s_barrier")
        a(f"s_lshl_b32 s{sT0}, s{sJ}, 2\ns_add_u32 s{sT0}, s{sT0}, s{sW}\ns_lshl_b32 s{sT0}, s{sT0}, 5\ns_add_u32 s{sT0}, s{sT0}, s{sR}\ns_lshl_b32 s{sT0}, s{sT0}, 7")
        a(f"s_add_u32 s{sT1}, s{sT0}, {LFLAG1}\ns_add_u32 s{sT0}, s{sT0}, {FLAG1}")
        a(f"v_mov_b32 v4, s{sTAG}\nv_lshlrev_b32 v5, 2, v0")
        a.wait_vm(None)
        a("s_mov_b32 exec_hi, 0")
        a.vmem(f"buffer_store_dword v4, v5, {sr(S_WS,4)}, s{sT1} offen")
        a.vmem(f"buffer_store_dword v4, v5, {sr(S_WS,4)}, s{sT0} offen sc1")
        a("s_mov_b64 exec, -1")
        self.stamp(4)

    def code_prefetch(self, tmp):
        if not self.prefetch: return
        a = self.a
        Ls = a.newlabel("nopf"); Lh = a.newlabel("here")
        a(f"s_cmp_lg_u32 s{sW}, 0\ns_cbranch_scc1 {Ls}")
        a(f"s_getpc_b64 {sr(S_RL,2)}")
        a.label(Lh)
        a(f"s_sub_u32 s{S_RL}, s{S_RL}, {Lh}-{KNAME}\ns_subb_u32 s{S_RL+1}, s{S_RL+1}, 0")
        a(f"s_mov_b32 s{S_RL+2}, L_code_end-{KNAME}\ns_mov_b32 s{S_RL+3}, 0x20000")
        a(f"s_sub_u32 s{sT0}, s{sI}, 16\ns_lshl_b32 s{sT0}, s{sT0}, 12\nv_lshlrev_b32 v{tmp}, 6, v0")
        a.vmem(f"buffer_load_dword v{tmp+1}, v{tmp}, {sr(S_RL,4)}, s{sT0} offen", None, cond=True)
        a.label(Ls)

    def p1_H(self):
        a = self.a
        vL, vL16 = 0, 2
        F = 128
        X = 64
        vX, vH0, vH1, vMa, vSw, vSr = 48, 50, 51, 52, 54, 55
        NR = 16
        MD = (64, 80)
        STL = 49152
        a(f"s_sub_u32 s{sT5}, s{sW}, 4\ns_lshl_b32 s{sT1}, s{sR}, 16\ns_add_u32 s{sT2}, s{sROT}, s{sT5}\ns_and_b32 s{sT2}, s{sT2}, 7\ns_lshl_b32 s{sT2}, s{sT2}, 7")
        a(f"v_lshrrev_b32 v4, 3, v{vL}\nv_and_b32 v5, 7, v{vL}\nv_lshlrev_b32 v{vX}, 10, v4\nv_lshl_add_u32 v{vX}, v5, 4, v{vX}")
        a(f"v_add_u32 v{vX}, s{sT2}, v{vX}\nv_xor_b32 v{vX+1}, 512, v{vX}")
        self.kernarg_wait()
        for o in range(8):
            for hf in range(2):
                a.vmem(f"buffer_load_dwordx4 {vr(X+8*o+4*hf,4)}, v{vX+hf}, {sr(S_X,4)}, s{sT1} offen{self.ntx}", f"x{o}")
            if o < 7: a(f"s_add_u32 s{sT1}, s{sT1}, 8192")
        self.wdma(0)
        a(f"s_lshl_b32 s{sT0}, s{sJ}, 2\ns_add_u32 s{sT0}, s{sT0}, s{sT5}\ns_lshl_b32 s{sT0}, s{sT0}, 5\ns_add_u32 s{sT0}, s{sT0}, s{sR}\ns_lshl_b32 s{sT0}, s{sT0}, 7\ns_add_u32 s{sT0}, s{sT0}, {LFLAG1}")
        a("s_mov_b64 exec, 1")
        a.vmem(f"buffer_load_dword v7, off, {sr(S_WS,4)}, s{sT0} sc1", "w0")
        a("s_mov_b64 exec, -1")
        a(f"v_lshrrev_b32 v6, 4, v{vL}\nv_xor_b32 v6, v6, v5\nv_lshlrev_b32 v6, 4, v6\nv_lshl_add_u32 v6, v4, 7, v6\ns_lshl_b32 s{sT3}, s{sT5}, 13")
        a(f"v_add_u32 v{vH0}, s{sT3}, v6\nv_xor_b32 v{vH1}, 64, v{vH0}")
        a(f"s_lshl_b32 s{sT2}, s{sT2}, 1\nv_lshlrev_b32 v{vMa}, 5, v5\nv_add_u32 v{vMa}, s{sT2}, v{vMa}\nv_xor_b32 v{vMa+1}, 1024, v{vMa}")
        a(f"s_lshl_b32 s{sT3}, s{sT5}, 3\nv_lshlrev_b32 v{vSw}, 5, v4\nv_and_b32 v6, 4, v5\nv_add3_u32 v{vSw}, v{vSw}, v6, s{sT3}\nv_lshlrev_b32 v{vSr}, 2, v4")
        self.get_tag()
        SS, QQ, T = 16, 32, 56
        for o in range(8):
            a.wait_vm(f"x{o}")
            for hf in range(2):
                f = F + 64 * hf + 8 * o
                self.unpack(f, X + 8 * o + 4 * hf, 4)
                for i in range(4):
                    if hf == 0 and i == 0:
                        a(f"v_pk_add_f32 {vr(T,2)}, {vr(f,2)}, {vr(f+2,2)}\nv_pk_mul_f32 {vr(T+2,2)}, {vr(f,2)}, {vr(f,2)}")
                    else:
                        if not (hf == 0 and i == 1): a(f"v_pk_add_f32 {vr(T,2)}, {vr(T,2)}, {vr(f+2*i,2)}")
                        a(f"v_pk_fma_f32 {vr(T+2,2)}, {vr(f+2*i,2)}, {vr(f+2*i,2)}, {vr(T+2,2)}")
            a(f"v_add_f32 v{SS+o}, v{T}, v{T+1}\nv_add_f32 v{QQ+o}, v{T+2}, v{T+3}")
        a.wait_vm("w0")
        self.stamp(1)
        a("s_barrier")
        Z = 40
        for o in range(8): a(f"v_add_f32_dpp v{Z+o}, v{SS+o}, v{SS+o} row_half_mirror row_mask:0xf bank_mask:0x5")
        for o in range(8): a(f"v_add_f32_dpp v{Z+o}, v{QQ+o}, v{QQ+o} row_half_mirror row_mask:0xf bank_mask:0xa")
        for mode in ("quad_perm:[1,0,3,2]", "quad_perm:[2,3,0,1]"):
            for o in range(8): a(f"v_add_f32_dpp v{Z+o}, v{Z+o}, v{Z+o} {mode} row_mask:0xf bank_mask:0xf")
        for o in range(8): a.ds(f"ds_write_b32 v{vSw}, v{Z+o} offset:{STL+o*256}")
        a(f"v_lshlrev_b32 v6, 5, v{vL}")
        a.wait_lg(None)
        a("s_barrier")
        a.ds(f"ds_read_b128 {vr(32,4)}, v6 offset:{STL}")
        a.ds(f"ds_read_b128 {vr(36,4)}, v6 offset:{STL+16}")
        for n in (1, 2, 3): self.wdma(n)
        a.wait_lg(None)
        a(f"v_pk_add_f32 v[32:33], v[32:33], v[34:35]\nv_pk_add_f32 v[36:37], v[36:37], v[38:39]\nv_pk_add_f32 v[32:33], v[32:33], v[36:37]")
        a(f"v_mul_f32 v32, {hex(f2u(-1/512))}, v32\nv_mul_f32 v33, {hex(f2u(1/512))}, v33")
        a(f"v_fma_f32 v33, -v32, v32, v33\nv_max_f32 v33, 0, v33\nv_add_f32 v33, {hex(f2u(1e-5))}, v33")
        a(f"v_rsq_f32 v33, v33\nv_mul_f32 v32, v32, v33")
        for o in range(8):
            a.ds(f"ds_bpermute_b32 v{NR+2*o}, v{vSr}, v33 offset:{o*32}", f"n{o}")
            a.ds(f"ds_bpermute_b32 v{NR+2*o+1}, v{vSr}, v32 offset:{o*32}", f"n{o}")
        for o in range(8):
            a.wait_lg(f"n{o}")
            for hf in range(2):
                f = F + 64 * hf + 8 * o
                for i in range(4):
                    a(f"v_pk_fma_f32 {vr(f+2*i,2)}, {vr(f+2*i,2)}, {vr(NR+2*o,2)}, {vr(NR+2*o,2)} op_sel:[0,0,1] op_sel_hi:[1,0,1]")
        def hrow(hf, o):
            d = MD[hf]; f = F + 64 * hf + 8 * o
            if hf == 0:
                for i in range(4): a(f"v_pk_fma_f32 {vr(f+2*i,2)}, {vr(f+2*i,2)}, {vr(d+8+2*i,2)}, {vr(d+2*i,2)}")
            else:
                for i in range(8): a(f"v_fma_f32 v{f+i}, v{f+i}, v{d+8+i}, v{d+i}")
            for i in range(4): a(f"v_cvt_pk_bf16_f32 v{f+i}, v{f+2*i}, v{f+2*i+1}")
            a.ds(f"ds_write_b128 v{vH0+(o&1)}, {vr(f,4)} offset:{hf*32768+o*1024}")
        self.stamp(2)
        a("s_barrier")
        self.stamp(3)
        for hf in range(2):
            for k, off in enumerate((0, 16, 2048, 2064)): a.ds(f"ds_read_b128 {vr(MD[hf]+4*k,4)}, v{vMa+hf} offset:{MODL+off}", f"md{hf}")
        a.wait_lg("md0")
        for o in range(8): hrow(0, o)
        a.wait_lg(None)
        a("s_barrier")
        self.stamp(4)
        if self.opts.get("hprio", "1") == "1": a("s_setprio 1")
        for n in range(7):
            if 1 <= n <= 4: self.wdma(n + 3)
            if n <= 3:
                hrow(1, 2 * n); hrow(1, 2 * n + 1)
            if n == 3: a.wait_lg(None)
            if n == 4: self.rl_setup()
            a.wait_vm(f"w{n+1}")
            a("s_barrier")
            if n == 4:
                a(f"v_mov_b32 v4, {RLCNT}\nv_mov_b32 v5, 0")
                a.ds("ds_write_b32 v4, v5")
                a.wait_lg(None)
            if n == int(self.opts.get("rlat", -1)): self.rl_issue(range(4))
        a("s_barrier")
        self.stamp(5)

    def rl_setup(self):
        a = self.a
        vL, vL16 = 0, 2
        sU, sP, sDst, sSA, sSB, sDA, sDB, sSrc, sNF = RLS
        Lb, Lj = a.newlabel("rl_w1"), a.newlabel("rl_j")
        vRo, vRa = RLV, RLV + 1
        t0, t1, t2 = 4, 5, 6
        a(f"s_lshl_b32 s{sU}, s{sT5}, 5\ns_add_u32 s{sU}, s{sU}, s{sR}\ns_mov_b32 s{S_RL+3}, 0x20000")
        a(f"s_cmp_ge_u32 s{sU}, 60\ns_cbranch_scc1 {Lb}")
        a(f"""s_cmp_ge_u32 s{sU}, 16
s_cselect_b32 s{S_RL}, s{S_PW2}, s{S_PWO}
s_cselect_b32 s{S_RL+1}, s{S_PW2+1}, s{S_PWO+1}
s_cselect_b32 s{S_RL+2}, {1376*1024}, 0
s_cselect_b32 s{sT0}, 16, 0
s_cselect_b32 s{sDB}, 88, 32
s_cselect_b32 s{sDst}, {W2I - WOI}, 0
s_max_u32 s{S_RL+2}, s{S_RL+2}, {512*1024}
s_add_u32 s{sDst}, s{sDst}, {WOI}
s_lshl_b32 s{sDB}, s{sDB}, 10
s_sub_u32 s{sT0}, s{sU}, s{sT0}
s_mov_b32 s{sP}, 8192
s_lshl_b32 s{sSrc}, s{sT0}, 15
s_lshl_b32 s{sT2}, s{sJ}, 7
s_add_u32 s{sSrc}, s{sSrc}, s{sT2}
s_mul_i32 s{sT2}, s{sJ}, s{sDB}
s_lshl_b32 s{sT2}, s{sT2}, 1
s_add_u32 s{sDst}, s{sDst}, s{sT2}
s_lshl_b32 s{sT2}, s{sT0}, 11
s_add_u32 s{sDst}, s{sDst}, s{sT2}
s_mov_b32 s{sDA}, 1024
s_mov_b32 s{sSA}, 2048
s_mov_b32 s{sSB}, 256
s_mov_b32 s{sNF}, 4""")
        self.dma_lane_off(vRo, vL, t0, t1, 1024)
        a(f"v_lshrrev_b32 v{t0}, 5, v{vL}\nv_lshlrev_b32 v{vRa}, 10, v{t0}")
        a(f"v_bfe_u32 v{t0}, v{vL}, 4, 1\nv_lshl_add_u32 v{vRa}, v{t0}, 5, v{vRa}")
        a(f"v_and_b32 v{t0}, 1, v{vL}\nv_lshl_add_u32 v{vRa}, v{t0}, 4, v{vRa}")
        a(f"v_bfe_u32 v{t0}, v{vL}, 1, 1\nv_lshl_add_u32 v{vRa}, v{t0}, 3, v{vRa}")
        a(f"s_branch {Lj}")
        a.label(Lb)
        a(f"""s_mov_b32 s{S_RL}, s{S_PW1}
s_mov_b32 s{S_RL+1}, s{S_PW1+1}
s_cmp_lt_u32 s{sU}, 108
s_cselect_b32 s{S_RL+2}, {512*2752}, 0
s_sub_u32 s{sT0}, s{sU}, 60
s_and_b32 s{sT1}, s{sT0}, 15
s_lshr_b32 s{sT0}, s{sT0}, 4
s_mov_b32 s{sP}, {8*2752}
s_mul_i32 s{sT3}, s{sJ}, 11
s_lshl_b32 s{sT2}, s{sT0}, 2
s_add_u32 s{sT3}, s{sT3}, s{sT2}
s_mul_i32 s{sSrc}, s{sT1}, {32*2752}
s_lshl_b32 s{sT2}, s{sT3}, 5
s_add_u32 s{sSrc}, s{sSrc}, s{sT2}
s_lshl_b32 s{sDst}, s{sT3}, 14
s_lshl_b32 s{sT1}, s{sT1}, 10
s_add_u32 s{sDst}, s{sDst}, s{sT1}
s_add_u32 s{sDst}, s{sDst}, {W1I}
s_mov_b32 s{sDA}, 32768
s_mov_b32 s{sDB}, 16384
s_mov_b32 s{sSA}, 256
s_mov_b32 s{sSB}, 32
s_cmp_eq_u32 s{sT0}, 2
s_cselect_b32 s{sNF}, 3, 4
s_sub_u32 s{sT2}, 2752, s{sT2}""")
        self.dma_lane_off(vRo, vL, t0, t1, 2752)
        a(f"v_bfe_u32 v{t0}, v{vL}, 4, 1\nv_lshlrev_b32 v{t0}, 6, v{t0}\nv_and_b32 v{t1}, 3, v{vL}\nv_lshl_add_u32 v{t0}, v{t1}, 4, v{t0}")
        a(f"v_cmp_le_i32 vcc, s{sT2}, v{t0}\nv_mov_b32 v{t0}, 0x400000\nv_cndmask_b32 v{vRo}, v{vRo}, v{t0}, vcc")
        a(f"v_lshrrev_b32 v{t0}, 4, v{vL}\nv_lshlrev_b32 v{vRa}, 10, v{t0}")
        a(f"v_lshl_add_u32 v{vRa}, v{t1}, 3, v{vRa}")
        a.label(Lj)
        a(f"v_bfe_u32 v{t0}, v{vL}, 2, 2\nv_lshl_add_u32 v{vRa}, v{t0}, 6, v{vRa}")
        a(f"s_lshl_b32 s{sT0}, s{sT5}, 12\ns_add_u32 s{sU2}, s{sT0}, {RLST}\nv_add_u32 v{vRa}, s{sU2}, v{vRa}")
        a(f"v_add_u32 v{vRa+1}, s{sSB}, v{vRa}\nv_add_u32 v{vRa+2}, s{sSA}, v{vRa}\nv_add_u32 v{vRa+3}, s{sSA}, v{vRa+1}")

    def rl_issue(self, octets):
        a = self.a
        sU, sP, sDst, sSA, sSB, sDA, sDB, sSrc, sNF = RLS
        for o in octets:
            a(f"s_add_u32 m0, s{sU2}, {o*1024}")
            a.vmem(f"buffer_load_dwordx4 v{RLV}, {sr(S_RL,4)}, s{sSrc} offen{self.nt} lds", "rl")
            if o < 3: a(f"s_add_u32 s{sSrc}, s{sSrc}, s{sP}")
    def rl_read(self):
        a = self.a
        a.wait_vm("rl")
        for f in range(4):
            for kq in range(2):
                a.ds(f"ds_read_b64_tr_b16 {vr(RLT+4*f+2*kq,2)}, v{RLV+1+f} offset:{kq*512}", "rt")
    def rl_store(self):
        a = self.a
        sU, sP, sDst, sSA, sSB, sDA, sDB, sSrc, sNF = RLS
        Ls = a.newlabel("norl2")
        a.wait_lg("rt")
        a(f"s_cmp_ge_u32 s{sU}, 108\ns_cbranch_scc1 {Ls}")
        a(f"s_add_u32 s{sSA}, s{sDst}, s{sDB}\ns_add_u32 s{sSB}, s{sDst}, s{sDA}\ns_add_u32 s{sP}, s{sSA}, s{sDA}")
        for f, sd in enumerate((sDst, sSA, sSB, sP)):
            if f == 3: a(f"s_cmp_eq_u32 s{sNF}, 3\ns_cbranch_scc1 {Ls}")
            a.vmem(f"buffer_store_dwordx4 {vr(RLT+4*f,4)}, v2, {sr(S_WS,4)}, s{sd} offen sc1", "rs", cond=True)
        a.label(Ls)

    def end(self):
        a = self.a
        if self.opts.get("echo") or self.opts.get("delay"):
            L = a.newlabel("echo")
            if self.opts.get("echo"):
                a(f"s_sub_u32 s100, s101, s100\ns_mul_i32 s100, s100, {int(self.opts.get('mult', 1))}\ns_min_u32 s100, s100, 100000")
                a(f"s_memrealtime {sr(sST,2)}\ns_waitcnt lgkmcnt(0)\ns_mov_b32 s101, s{sST}")
                a.label(L)
                a(f"s_memrealtime {sr(sST,2)}\ns_waitcnt lgkmcnt(0)\ns_sub_u32 s{sST}, s{sST}, s101\ns_cmp_lt_u32 s{sST}, s100\ns_cbranch_scc1 {L}")
            else:
                a(f"s_memtime {sr(sST,2)}\ns_waitcnt lgkmcnt(0)\ns_mov_b32 s101, s{sST}")
                a.label(L)
                a(f"s_memtime {sr(sST,2)}\ns_waitcnt lgkmcnt(0)\ns_sub_u32 s{sST}, s{sST}, s101\ns_cmp_lt_u32 s{sST}, {int(self.opts['delay'])}\ns_cbranch_scc1 {L}")
        self.flush_stamps()
        self.a("s_endpgm")

    def role(self, r):
        a = self.a
        a.vm = []; a.lg = []
        self.vstamp = 1
        if self.stamps: a(f"v_mov_b32 v{self.vstamp}, 0")
        self.stamp(0)
        (self.p1_M if r == "M" else self.p1_H)()
        if self.stop_after == 1: return self.end()
        from phases import p2, p3, p4, p5
        p2(self, r)
        if self.stop_after == 2: return self.end()
        p3(self, r)
        if self.stop_after == 3: return self.end()
        p4(self, r)
        if self.stop_after == 4: return self.end()
        p5(self, r)
        self.end()

    def build(self):
        a = self.a
        self.prologue()
        self.role("M")
        a.label("L_H")
        self.role("H")
        a.label("L_exit")
        a("s_endpgm")
        a.label("L_code_end")
        rep = []
        body, added = fix_hazards(a.L, rep)
        self.hazard_report = rep
        hdr = open("adaLN_cond__softmax_full_mha__dense_activation_relu__prompt.s.ref").read().split("; Override launch")[0]
        src = hdr + f"; @launch grid=(256,1,1) block=(512,1,1) lds={LDSSZ}\n"
        src += f'.amdgcn_target "amdgcn-amd-amdhsa--gfx950"\n.text\n.globl {KNAME}\n.p2align 8\n.type {KNAME},@function\n{KNAME}:\n'
        src += "\n".join(body) + "\n"
        src += f""".section .rodata,"a"
.p2align 6
.amdhsa_kernel {KNAME}
  .amdhsa_next_free_vgpr 256
  .amdhsa_next_free_sgpr 102
  .amdhsa_accum_offset 256
  .amdhsa_group_segment_fixed_size 0
  .amdhsa_kernarg_size 88
  .amdhsa_user_sgpr_count 2
  .amdhsa_user_sgpr_kernarg_segment_ptr 1
  .amdhsa_system_sgpr_workgroup_id_x 1
.end_amdhsa_kernel
"""
        return src

if __name__ == "__main__":
    import argparse
    ap = argparse.ArgumentParser()
    ap.add_argument("-o", default="out.s")
    ap.add_argument("--stamps", action="store_true")
    ap.add_argument("--stop", type=int, default=None)
    ap.add_argument("--slow", action="store_true")
    ap.add_argument("--rep", action="store_true")
    ap.add_argument("--opt", action="append", default=[])
    args = ap.parse_args()
    g = Gen(stamps=args.stamps, stop_after=args.stop, force_slow=args.slow, opts=dict(o.split("=") for o in args.opt))
    s = g.build()
    open(args.o, "w").write(s)
    if args.rep:
        for r in g.hazard_report: print(r)
    print("wrote", args.o, len(s), "bytes;", len(g.hazard_report), "nops inserted", file=sys.stderr)
```

```python
import sys, math
from dsl import *

KNAME = "adaLN_cond__softmax_full_mha__dense_activation_relu__prompt_kernel"

EPOCH  = 0
FLAG2  = 0x8000
FLAG4  = 0x10000
FLAG1  = 0x20000
STAT   = 0x40000
WOI    = 0x80000
KV     = 0x100000
OIMG   = 0x500000
XIMG   = 0x700000
HIMG   = 0x900000
W1I    = 0xE80000
W2I    = 0xFE0000
MODP   = 0x1140000
LREC   = 0x1158000
LFLAG1 = 0x11A8000
FLAG1B = 0x18000
WSEND  = 0x11C8000
LOG    = 0x1200000
WSSIZE = 0x1400000

WRING = 65536
SLOT  = 24576
QX    = WRING + SLOT
CB    = 40960
RLST  = WRING
RLCNT = WRING + 16384
VRING = 98304
RB3   = 65536
RB5   = 32768
MODL  = 57344
XPL   = 16384
MV    = 147456
ST1   = MV + 2048
ST2   = ST1 + 4096
MV2   = ST2 + 4096
LDSSZ = 163840

S_WS, S_X, S_WQ, S_WM, S_C, S_RL, S_OUT = 4, 8, 12, 16, 20, 24, 28
S_PWO, S_PW1, S_PW2 = 32, 36, 38
sW, sXCD, sI, sR, sJ, sTAG = 40, 41, 42, 43, 44, 45
sT0, sT1, sT2, sT3, sT4, sT5, sCNT = 46, 47, 48, 49, 50, 51, 52
sVM = 54
sKVB, sKVO = 56, 57
sB1, sB1b = 58, 59
sU0, sU1, sU2, sU3 = 60, 61, 62, 63
sTB = 3
sROT = 53
sLN = 64
sST = 96
sPM = 98
RLS = [sLN + 8 + k for k in range(9)]
RLV, RLT = 128, 136
import os
POLL_LIMIT = int(os.environ.get('POLL_LIMIT', 400000))

LOG2E = 1.4426950408889634
def f2u(x):
    import struct
    return struct.unpack("<I", struct.pack("<f", x))[0]

class Gen:
    def __init__(self, stamps=False, stop_after=None, force_slow=False, opts=None):
        self.opts = opts or {}
        self.early_w = int(self.opts.get("early_w", 3))
        self.prefetch = int(self.opts.get("prefetch", 1))
        self.nt = " nt" if self.opts.get("nt", "1") == "1" else ""
        self.ntx = " nt" if self.opts.get("ntx", "1") == "1" else ""
        self.a = Asm()
        self.stamps = stamps
        self.stop_after = stop_after
        self.force_slow = force_slow
        self.nstamp = 0

    def stamp(self, idx):
        echo = self.opts.get("echo")
        if echo:
            lo, hi = map(int, echo.split("-"))
            if idx in (lo, hi):
                self.a(f"s_memrealtime {sr(sST,2)}")
                self.a("s_waitcnt lgkmcnt(0)"); self.a.lg = []
                self.a(f"s_mov_b32 s{100 if idx == lo else 101}, s{sST}")
        if not self.stamps: return
        a = self.a
        a(f"s_memtime {sr(sST,2)}\ns_memrealtime s[100:101]")
        a("s_waitcnt lgkmcnt(0)"); a.lg = []
        a(f"v_writelane_b32 v{self.vstamp}, s{sST}, {idx}\nv_writelane_b32 v{self.vstamp}, s100, {idx+32}")

    def flush_stamps(self):
        if not self.stamps: return
        a = self.a
        a(f"s_lshl_b32 s{sT0}, s2, 3\ns_add_u32 s{sT0}, s{sT0}, s{sW}\ns_lshl_b32 s{sT0}, s{sT0}, 8\ns_add_u32 s{sT0}, s{sT0}, {LOG}")
        a(f"v_lshlrev_b32 v4, 2, v0")
        a.vmem(f"buffer_store_dword v{self.vstamp}, v4, {sr(S_WS,4)}, s{sT0} offen")

    def poll(self, loads, cmps, name):
        a = self.a
        L = a.newlabel("poll_" + name); Ld = a.newlabel("pdone_" + name)
        a(f"s_mov_b32 s{sCNT}, {POLL_LIMIT}")
        a.label(L)
        for ld in loads: a(ld)
        a(f"s_sub_u32 s{sCNT}, s{sCNT}, 1\ns_cmp_eq_u32 s{sCNT}, 0")
        a("s_waitcnt vmcnt(0)"); a.vm = []
        a(f"s_cbranch_scc1 {Ld}")
        for n, v in enumerate(cmps):
            if n == 0: a(f"v_cmp_ne_u32 vcc, s{sTAG}, v{v}")
            else:
                a(f"v_cmp_ne_u32 {sr(sPM,2)}, v{v}, s{sTAG}")
                a(f"s_or_b64 vcc, vcc, {sr(sPM,2)}")
        a("s_nop 0")
        a(f"s_cbranch_vccnz {L}")
        a.label(Ld)

    def unpack(self, dst, src, n):
        a = self.a
        for i in range(n):
            a(f"v_and_b32 v{dst+2*i+1}, 0xffff0000, v{src+i}")
            a(f"v_lshlrev_b32 v{dst+2*i}, 16, v{src+i}")

    def swap23(self, dst, src, tmp):
        a = self.a
        a(f"v_and_b32 v{tmp}, 4, v{src}\nv_lshlrev_b32 v{tmp}, 1, v{tmp}")
        a(f"v_and_b32 v{dst}, 0xfffffff3, v{src}") if dst != src else None
        assert dst != src
        a(f"v_or_b32 v{dst}, v{dst}, v{tmp}")
        a(f"v_and_b32 v{tmp}, 8, v{src}\nv_lshrrev_b32 v{tmp}, 1, v{tmp}\nv_or_b32 v{dst}, v{dst}, v{tmp}")

    def gemv_issue(self, base, s_lc, s_dst, first=False, cond=False):
        a = self.a
        vC, vOff = base, base + 1
        a(f"s_lshl_b32 s{s_dst}, s{s_lc}, 8\ns_mul_i32 s{sT4}, s{sXCD}, 12288\ns_add_u32 s{s_dst}, s{s_dst}, s{sT4}\ns_add_u32 s{s_dst}, s{s_dst}, {MODP}")
        a(f"s_lshl_b32 s{s_lc}, s{s_lc}, 7\ns_mul_i32 s{sT4}, s{sXCD}, {64*6144}\ns_add_u32 s{s_lc}, s{s_lc}, s{sT4}\ns_lshl_b32 s{sT4}, s{sXCD}, 7")
        self.dma_lane_off(vOff, 0, base + 2, base + 3, 6144)
        a(f"v_lshlrev_b32 v{base+2}, 1, v0\ns_mov_b32 m0, 0")
        if first: self.kernarg_wait()
        a.vmem(f"buffer_load_ushort v{vC}, v{base+2}, {sr(S_C,4)}, s{sT4} offen", "gc", cond)
        for o in range(8 if first else 1): self.gemv_octet(base, s_lc, o, cond)
    def gemv_octet(self, base, s_lc, o, cond=False):
        a = self.a
        if o: a(f"s_mov_b32 m0, {o*1024}\ns_add_u32 s{s_lc}, s{s_lc}, {8*6144}")
        a.vmem(f"buffer_load_dwordx4 v{base+1}, {sr(S_WM,4)}, s{s_lc} offen{self.nt} lds", "gw", cond)
    def gemv_finish(self, base, s_dst, cond=False):
        a = self.a
        vC, vT, vA, vB = base, base + 1, base + 3, base + 2
        S, W = base + 4, base + 12
        D = base + 44
        a(f"v_lshrrev_b32 v{vT}, 4, v0\nv_lshlrev_b32 v{vA}, 10, v{vT}\nv_lshlrev_b32 v{D}, 4, v{vT}")
        a(f"v_bfe_u32 v{vT}, v0, 2, 2\nv_lshl_add_u32 v{vA}, v{vT}, 6, v{vA}\nv_lshl_add_u32 v{D+1}, v{vT}, 6, v{D}")
        a(f"v_and_b32 v{vT}, 3, v0\nv_lshl_add_u32 v{vA}, v{vT}, 3, v{vA}")
        a.wait_vm("gc")
        a(f"v_lshlrev_b32 v{vC}, 16, v{vC}\nv_mul_f32 v{vT}, {hex(f2u(-LOG2E))}, v{vC}\nv_exp_f32 v{vT}, v{vT}\nv_add_f32 v{vT}, 1.0, v{vT}")
        a(f"v_rcp_f32 v{vT}, v{vT}\nv_mul_f32 v{vC}, v{vC}, v{vT}\nv_cvt_pk_bf16_f32 v{vC}, v{vC}, v{vC}")
        a.ds(f"ds_write_b16 v{vB}, v{vC} offset:8192")
        a.ds(f"ds_read_b128 {vr(S,4)}, v{D} offset:8192")
        a.ds(f"ds_read_b128 {vr(S+4,4)}, v{D} offset:8256")
        a(f"v_mov_b32 v{vB}, v{D+1}\nv_mov_b32 v{vT}, 0xff")
        a.wait_vm("gw")
        for ct in range(4):
            for ks in range(2):
                for kq in range(2):
                    a.ds(f"ds_read_b64_tr_b16 {vr(W+8*ct+4*ks+2*kq,2)}, v{vA} offset:{ks*4096+kq*512+(ct>>1)*256+(ct&1)*32}", f"gt{ct}")
        acc = [D, S + 0, W + 0, W + 8]
        acc = [D, W + 0, W + 8, W + 16]
        for ct in range(4):
            a.wait_lg(f"gt{ct}")
            a(f"v_mfma_f32_16x16x32_bf16 {vr(acc[ct],4)}, {vr(W+8*ct,4)}, {vr(S,4)}, 0")
            a(f"v_mfma_f32_16x16x32_bf16 {vr(acc[ct],4)}, {vr(W+8*ct+4,4)}, {vr(S+4,4)}, {vr(acc[ct],4)}")
        for ct in range(1, 4):
            for r in range(4):
                a(f"v_mov_b32_dpp v{D+r}, v{acc[ct]+r} quad_perm:[0,1,2,3] row_mask:0xf bank_mask:{hex(1 << ct)}")
        a(f"v_bfi_b32 v{D+1}, v{vT}, s{sTAG}, v{D+1}\nv_bfi_b32 v{D+3}, v{vT}, s{sTAG}, v{D+3}")
        a(f"s_mov_b32 exec_lo, 0x11111111\ns_mov_b32 exec_hi, 0x11111111")
        a.vmem(f"buffer_store_dwordx4 {vr(D,4)}, v{vB}, {sr(S_WS,4)}, s{s_dst} offen sc1", "mst", cond)
        a("s_mov_b64 exec, -1")

    def gather_issue(self, base, vOff, s_base, cond=False):
        a = self.a
        a(f"s_mov_b32 s{sT4}, s{s_base}")
        for p in range(8):
            a.vmem(f"buffer_load_dwordx4 {vr(base+4*p,4)}, v{vOff}, {sr(S_WS,4)}, s{sT4} offen sc1", f"p{p}", cond)
            if p < 7: a(f"s_add_u32 s{sT4}, s{sT4}, 12288")
    def gather_finish(self, base, vOff, s_base, s_add, name, pk=True):
        a = self.a
        L = a.newlabel("g_" + name); Ld = a.newlabel("gd_" + name)
        a(f"s_mov_b32 s{sCNT}, {POLL_LIMIT}")
        a.label(L)
        chk = base + 32
        for p in range(8):
            a.wait_vm(f"p{p}")
            r = base + 4 * p
            a(f"v_xor_b32 v{r+1}, s{sTB}, v{r+1}\nv_xor_b32 v{r+3}, s{sTB}, v{r+3}")
            if p == 0: a(f"v_or_b32 v{chk}, v{r+1}, v{r+3}")
            else:
                a(f"v_or3_b32 v{chk}, v{chk}, v{r+1}, v{r+3}")
                if pk: a(f"v_pk_add_f32 {vr(base,2)}, {vr(base,2)}, {vr(r,2)}\nv_pk_add_f32 {vr(base+2,2)}, {vr(base+2,2)}, {vr(r+2,2)}")
                else:
                    for i in range(4): a(f"v_add_f32 v{base+i}, v{base+i}, v{r+i}")
        a(f"v_and_b32 v{chk}, 0xff, v{chk}\nv_cmp_ne_u32 vcc, 0, v{chk}")
        a(f"s_sub_u32 s{sCNT}, s{sCNT}, 1\ns_cmp_eq_u32 s{sCNT}, 0\ns_cbranch_scc1 {Ld}")
        a(f"s_cbranch_vccz {Ld}")
        st = a.save()
        self.gather_issue(base, vOff, s_base)
        a("s_waitcnt vmcnt(0)")
        a(f"s_branch {L}")
        a.restore(st)
        a.label(Ld)
        a(f"v_cvt_pk_bf16_f32 v{base+4}, v{base}, v{base+1}\nv_cvt_pk_bf16_f32 v{base+5}, v{base+2}, v{base+3}")
        if s_add is not None:
            self.unpack(base, base + 4, 2)
            for i in range(4): a(f"v_add_f32 v{base+i}, s{s_add}, v{base+i}")
            a(f"v_cvt_pk_bf16_f32 v{base+4}, v{base}, v{base+1}\nv_cvt_pk_bf16_f32 v{base+5}, v{base+2}, v{base+3}")

    def wdma_pre(self, n):
        self.a(f"s_add_u32 s{sT0}, s{sROT}, {n}\ns_and_b32 s{sT0}, s{sT0}, 7\ns_mul_i32 s{sT0}, s{sT0}, {64*3072}\ns_add_u32 s{sT0}, s{sT0}, s{sU0}")
        self.a(f"s_add_u32 m0, s{sU1}, {WRING + (n & 3) * SLOT}")
    def wdma_one(self, n, kind):
        self.a.vmem(f"buffer_load_dwordx4 v3, {sr(S_WQ,4)}, s{sT0} offen offset:{kind*1024} lds", f"w{n}")
    def wdma(self, n):
        self.wdma_pre(n)
        for kind in range(3): self.wdma_one(n, kind)

    def dma_lane_off(self, dst, vL, t0, t1, pitch):
        a = self.a
        a(f"v_lshrrev_b32 v{t0}, 5, v{vL}\nv_bfe_u32 v{t1}, v{vL}, 2, 2\nv_lshl_add_u32 v{t0}, v{t0}, 2, v{t1}")
        a(f"v_mul_u32_u24 v{dst}, {pitch}, v{t0}")
        a(f"v_bfe_u32 v{t0}, v{vL}, 4, 1\nv_lshl_add_u32 v{dst}, v{t0}, 6, v{dst}")
        a(f"v_and_b32 v{t0}, 3, v{vL}\nv_lshl_add_u32 v{dst}, v{t0}, 4, v{dst}")

    def prologue(self):
        a = self.a
        if self.opts.get("echo", "").startswith("99-"): a("s_memrealtime s[100:101]")
        a(f"s_cmp_ge_u32 s2, 256\ns_cbranch_scc1 L_exit")
        a(f"""s_load_dwordx2 {sr(S_WM,2)}, s[0:1], 56
s_load_dwordx2 {sr(S_C,2)}, s[0:1], 48
s_load_dwordx2 {sr(S_WS,2)}, s[0:1], 80
s_load_dwordx2 {sr(S_X,2)}, s[0:1], 0
s_load_dwordx2 {sr(S_WQ,2)}, s[0:1], 8
s_load_dwordx2 {sr(S_OUT,2)}, s[0:1], 64
s_load_dwordx2 {sr(S_PWO,2)}, s[0:1], 16
s_load_dwordx4 {sr(S_PW1,4)}, s[0:1], 32""")
        a(f"v_lshrrev_b32 v1, 6, v0\nv_and_b32 v0, 63, v0\nv_readfirstlane_b32 s{sW}, v1\nv_lshlrev_b32 v2, 4, v0")
        for s, n in ((S_WS, WSSIZE if self.stamps else WSEND), (S_X, 2097152), (S_WQ, 1572864), (S_WM, 3145728), (S_C, 1024), (S_OUT, 2097152)):
            a(f"s_mov_b32 s{s+2}, {n}\ns_mov_b32 s{s+3}, 0x20000")
        a(f"""s_and_b32 s{sXCD}, s2, 7
s_lshr_b32 s{sI}, s2, 3
s_lshr_b32 s{sT0}, s{sI}, 3
s_lshl_b32 s{sR}, s{sXCD}, 2
s_add_u32 s{sR}, s{sR}, s{sT0}
s_add_u32 s{sJ}, s{sI}, {int(self.opts.get('joff', 0))}
s_and_b32 s{sJ}, s{sJ}, 7
s_add_u32 s{sROT}, s{sJ}, s{sXCD}
s_mov_b32 s{sVM}, 0xffff
s_mov_b32 s{sVM+1}, 0xffff
s_mul_i32 s{sU0}, s{sW}, {8*3072}
s_lshl_b32 s{sT1}, s{sJ}, 7
s_add_u32 s{sU0}, s{sU0}, s{sT1}
s_mul_i32 s{sU1}, s{sW}, 3072
s_and_b32 s{sT0}, s{sW}, 1
s_lshl_b32 s{sT0}, s{sT0}, 5""")
        self.dma_lane_off(3, 0, 4, 5, 3072)
        a(f"v_xor_b32 v3, s{sT0}, v3")
        a(f"s_cmp_ge_u32 s{sW}, 4\ns_cbranch_scc1 L_H")

    def kernarg_wait(self):
        self.a("s_waitcnt lgkmcnt(0)")
        self.a(f"s_load_dword s{sTAG}, {sr(S_WS,2)}, {EPOCH}")

    def get_tag(self):
        self.a("s_waitcnt lgkmcnt(0)"); self.a.lg = []
        self.a(f"s_add_u32 s{sTAG}, s{sTAG}, 0x9e3779b9\ns_and_b32 s{sTB}, s{sTAG}, 0xff")

    def p1_M(self):
        a = self.a
        vL, vL16 = 0, 2
        G = 192
        Lno = a.newlabel("nomod1")
        a(f"s_lshl_b32 s{sT0}, s{sW}, 5\ns_add_u32 s{sU2}, s{sT0}, s{sI}\ns_cmp_ge_u32 s{sU2}, 16\ns_cbranch_scc1 {Lno}")
        st = a.save()
        self.gemv_issue(G, sU2, sU3, first=True)
        if self.opts.get("preinst", "1") == "1":
            a(f"v_lshlrev_b32 v5, 2, v0")
            a.vmem(f"buffer_load_dword v7, v5, {sr(S_WS,4)}, s{sU3} offen sc1")
        self.wdma(0)
        self.get_tag()
        self.gemv_finish(G, sU3)
        Lj = a.newlabel("join1")
        a(f"s_branch {Lj}")
        a.label(Lno)
        a.restore(st)
        self.kernarg_wait()
        self.wdma(0)
        self.code_prefetch(G)
        self.get_tag()
        a.wait_vm(None)
        a.label(Lj)
        a.vm = [("old", False)]
        for n in range(1, 1 + self.early_w): self.wdma(n)
        vA, vW0, vW1, vVst, vQ = 16, 18, 19, 20, 21
        t0, t1, t2 = 4, 5, 6
        a(f"v_and_b32 v{t0}, 15, v{vL}\nv_lshrrev_b32 v{t1}, 4, v{vL}\nv_lshrrev_b32 v{t2}, 1, v{t0}\nv_xor_b32 v{t2}, v{t2}, v{t1}\nv_lshlrev_b32 v{t2}, 4, v{t2}")
        a(f"v_lshl_add_u32 v{vA}, v{t0}, 7, v{t2}\nv_xor_b32 v{vA+1}, 64, v{vA}")
        a(f"v_mul_u32_u24 v{vW0}, 3072, v{t1}\nv_bfe_u32 v{t2}, v{vL}, 2, 2\nv_lshl_add_u32 v{vW0}, v{t2}, 6, v{vW0}")
        a(f"v_xor_b32 v{t2}, s{sW}, v{t1}\nv_and_b32 v{t2}, 1, v{t2}\nv_lshl_add_u32 v{vW0}, v{t2}, 5, v{vW0}\nv_and_b32 v{t2}, 3, v{vL}\nv_lshl_add_u32 v{vW0}, v{t2}, 3, v{vW0}")
        a(f"s_lshr_b32 s{sT3}, s{sW}, 1\ns_lshl_b32 s{sT3}, s{sT3}, 8\ns_add_u32 s{sT3}, s{sT3}, {WRING}\nv_add_u32 v{vW0}, s{sT3}, v{vW0}\nv_add_u32 v{vW1}, {2*SLOT}, v{vW0}")
        self.swap23(vVst, t0, t2)
        a(f"v_lshlrev_b32 v{vVst}, 4, v{vVst}\nv_and_b32 v{t2}, 1, v{t1}\nv_lshl_add_u32 v{vVst}, v{t2}, 9, v{vVst}\nv_lshrrev_b32 v{t2}, 1, v{t1}\nv_lshl_add_u32 v{vVst}, v{t2}, 8, v{vVst}")
        a(f"s_lshl_b32 s{sT3}, s{sW}, 11\ns_add_u32 s{sT3}, s{sT3}, {QX}\nv_add_u32 v{vQ}, s{sT3}, v{vL16}")
        a(f"s_lshl_b32 s{sU2}, s{sJ}, 2\ns_add_u32 s{sU2}, s{sU2}, s{sW}\ns_lshl_b32 s{sU2}, s{sU2}, 17\ns_lshl_b32 s{sT3}, s{sR}, 12\ns_add_u32 s{sU2}, s{sU2}, s{sT3}\ns_add_u32 s{sU2}, s{sU2}, {KV}")
        ACC = 24
        FA = (72, 88)
        FW = (104, 116)
        PARK = 128
        NPARK = 0
        def wreg(step): return PARK + 12 * step if step < NPARK else FW[step & 1]
        def rdW(step, lo=0, hi=6, tag=None):
            n, ks = step >> 1, step & 1
            vb = vW0 if (n & 3) < 2 else vW1
            for i in range(lo, hi):
                kind, kq = divmod(i, 2)
                off = (n & 1) * SLOT + ks * 12288 + kind * 1024 + kq * 512
                a.ds(f"ds_read_b64_tr_b16 {vr(wreg(step)+4*kind+2*kq,2)}, v{vb} offset:{off}", tag or f"f{step}")
        def rdA(step, t):
            n, ks = step >> 1, step & 1
            a.ds(f"ds_read_b128 {vr(FA[step&1]+4*t,4)}, v{vA+ks} offset:{n*8192+t*2048}", f"f{step}")
        def mf(step, t, kind):
            d = ACC + 16 * kind + 4 * t
            c = "0" if step == 0 else vr(d, 4)
            w_, h_ = vr(wreg(step) + 4 * kind, 4), vr(FA[step & 1] + 4 * t, 4)
            A, B = (w_, h_) if kind < 2 else (h_, w_)
            a(f"v_mfma_f32_16x16x32_bf16 {vr(d,4)}, {A}, {B}, {c}")
        a(f"s_lshl_b32 s{sT1}, s{sW}, 10\ns_add_u32 s{sT2}, s{sT1}, {MODP}\ns_cmp_ge_u32 s{sW}, 2\ns_cselect_b32 s{sT3}, 1.0, 0")
        a(f"v_add_u32 v4, s{sT1}, v{vL16}")
        a.wait_vm("old")
        self.stamp(1)
        a("s_barrier")
        self.stamp(6)
        self.gather_issue(G, vL16, sT2)
        a("s_barrier")
        self.gather_finish(G, vL16, sT2, sT3, "m1")
        self.unpack(G, G + 4, 2)
        a.ds(f"ds_write_b128 v4, {vr(G,4)} offset:{MODL}")
        a.wait_lg(None)
        a("s_barrier")
        self.stamp(5)
        for n in range(1 + self.early_w, 4): self.wdma(n)
        rdW(0)
        a("s_barrier")
        self.stamp(2)
        for t in range(4): rdA(0, t)
        for step in range(16):
            nxt = step + 1
            a.wait_lg(None)
            slots = [[] for _ in range(12)]
            if nxt < 16:
                ops = [lambda t=t: rdA(nxt, t) for t in range(4)]
                ops = [lambda: rdW(nxt, 0, 1), lambda: rdW(nxt, 1, 2)] + ops[:1] + [lambda i=i: rdW(nxt, i, i + 1) for i in range(2, 6)] + ops[1:]
                for k, op in enumerate(ops): slots[(k * 7) // 10].append(op)
            c = (nxt >> 1) + 3
            if (nxt & 1) == 0 and c < 8:
                slots[7].append(lambda: self.wdma_pre(c))
                for kind in range(3): slots[8 + kind].append(lambda kind=kind: self.wdma_one(c, kind))
            k = 0
            for t in range(4):
                for kind in range(3):
                    mf(step, t, kind)
                    if k == 0 and nxt < 16 and (nxt & 1) == 0:
                        a.wait_vm(f"w{nxt >> 1}")
                        a("s_barrier")
                    for op in slots[k]: op()
                    k += 1
            if self.opts.get("lstamp") and step in (1, 3, 5, 7, 9, 11, 13): self.stamp(24 + step // 2)
        self.stamp(3)
        PK = 72
        def pack(kind, t32, p):
            d = ACC + 16 * kind + 8 * t32
            for i in (0, 2, 1, 3): a(f"v_cvt_pk_bf16_f32 v{p+i}, v{d+2*i}, v{d+2*i+1}")
            a(f"v_permlane16_swap_b32 v{p}, v{p+2}\nv_permlane16_swap_b32 v{p+1}, v{p+3}")
        for t32 in range(2):
            pack(1, t32, PK + 8 * t32)
            a.vmem(f"buffer_store_dwordx4 {vr(PK+8*t32,4)}, v{vL16}, {sr(S_WS,4)}, s{sU2} offen offset:{t32*2048} sc1", "kv")
            pack(2, t32, PK + 8 * t32 + 4)
            a.vmem(f"buffer_store_dwordx4 {vr(PK+8*t32+4,4)}, v{vVst}, {sr(S_WS,4)}, s{sU2} offen offset:{t32*2048+1024} sc1", "kv")
        a(f"s_mov_b32 s{sT0}, {hex(f2u(0.25*LOG2E))}")
        for i in range(16): a(f"v_mul_f32 v{ACC+i}, s{sT0}, v{ACC+i}")
        for t32 in range(2):
            pack(0, t32, 8 + 4 * t32)
            a.ds(f"ds_write_b128 v{vQ}, {vr(8+4*t32,4)} offset:{t32*1024}")
        a.wait_lg(None)
        a("s_barrier")
        a(f"s_lshl_b32 s{sT0}, s{sJ}, 2\ns_add_u32 s{sT0}, s{sT0}, s{sW}\ns_lshl_b32 s{sT0}, s{sT0}, 5\ns_add_u32 s{sT0}, s{sT0}, s{sR}\ns_lshl_b32 s{sT0}, s{sT0}, 7")
        a(f"s_add_u32 s{sT1}, s{sT0}, {LFLAG1}\ns_add_u32 s{sT0}, s{sT0}, {FLAG1}")
        a(f"v_mov_b32 v4, s{sTAG}\nv_lshlrev_b32 v5, 2, v0")
        a.wait_vm(None)
        a("s_mov_b32 exec_hi, 0")
        a.vmem(f"buffer_store_dword v4, v5, {sr(S_WS,4)}, s{sT1} offen")
        a.vmem(f"buffer_store_dword v4, v5, {sr(S_WS,4)}, s{sT0} offen sc1")
        a("s_mov_b64 exec, -1")
        self.stamp(4)

    def code_prefetch(self, tmp):
        if not self.prefetch: return
        a = self.a
        Ls = a.newlabel("nopf"); Lh = a.newlabel("here")
        a(f"s_cmp_lg_u32 s{sW}, 0\ns_cbranch_scc1 {Ls}")
        a(f"s_getpc_b64 {sr(S_RL,2)}")
        a.label(Lh)
        a(f"s_sub_u32 s{S_RL}, s{S_RL}, {Lh}-{KNAME}\ns_subb_u32 s{S_RL+1}, s{S_RL+1}, 0")
        a(f"s_mov_b32 s{S_RL+2}, L_code_end-{KNAME}\ns_mov_b32 s{S_RL+3}, 0x20000")
        a(f"s_sub_u32 s{sT0}, s{sI}, 16\ns_lshl_b32 s{sT0}, s{sT0}, 12\nv_lshlrev_b32 v{tmp}, 6, v0")
        a.vmem(f"buffer_load_dword v{tmp+1}, v{tmp}, {sr(S_RL,4)}, s{sT0} offen", None, cond=True)
        a.label(Ls)

    def p1_H(self):
        a = self.a
        vL, vL16 = 0, 2
        F = 128
        X = 64
        vX, vH0, vH1, vMa, vSw, vSr = 48, 50, 51, 52, 54, 55
        NR = 16
        MD = (64, 80)
        STL = 49152
        a(f"s_sub_u32 s{sT5}, s{sW}, 4\ns_lshl_b32 s{sT1}, s{sR}, 16\ns_add_u32 s{sT2}, s{sROT}, s{sT5}\ns_and_b32 s{sT2}, s{sT2}, 7\ns_lshl_b32 s{sT2}, s{sT2}, 7")
        a(f"v_lshrrev_b32 v4, 3, v{vL}\nv_and_b32 v5, 7, v{vL}\nv_lshlrev_b32 v{vX}, 10, v4\nv_lshl_add_u32 v{vX}, v5, 4, v{vX}")
        a(f"v_add_u32 v{vX}, s{sT2}, v{vX}\nv_xor_b32 v{vX+1}, 512, v{vX}")
        self.kernarg_wait()
        for o in range(8):
            for hf in range(2):
                a.vmem(f"buffer_load_dwordx4 {vr(X+8*o+4*hf,4)}, v{vX+hf}, {sr(S_X,4)}, s{sT1} offen{self.ntx}", f"x{o}")
            if o < 7: a(f"s_add_u32 s{sT1}, s{sT1}, 8192")
        self.wdma(0)
        a(f"s_lshl_b32 s{sT0}, s{sJ}, 2\ns_add_u32 s{sT0}, s{sT0}, s{sT5}\ns_lshl_b32 s{sT0}, s{sT0}, 5\ns_add_u32 s{sT0}, s{sT0}, s{sR}\ns_lshl_b32 s{sT0}, s{sT0}, 7\ns_add_u32 s{sT0}, s{sT0}, {LFLAG1}")
        a("s_mov_b64 exec, 1")
        a.vmem(f"buffer_load_dword v7, off, {sr(S_WS,4)}, s{sT0} sc1", "w0")
        a("s_mov_b64 exec, -1")
        a(f"v_lshrrev_b32 v6, 4, v{vL}\nv_xor_b32 v6, v6, v5\nv_lshlrev_b32 v6, 4, v6\nv_lshl_add_u32 v6, v4, 7, v6\ns_lshl_b32 s{sT3}, s{sT5}, 13")
        a(f"v_add_u32 v{vH0}, s{sT3}, v6\nv_xor_b32 v{vH1}, 64, v{vH0}")
        a(f"s_lshl_b32 s{sT2}, s{sT2}, 1\nv_lshlrev_b32 v{vMa}, 5, v5\nv_add_u32 v{vMa}, s{sT2}, v{vMa}\nv_xor_b32 v{vMa+1}, 1024, v{vMa}")
        a(f"s_lshl_b32 s{sT3}, s{sT5}, 3\nv_lshlrev_b32 v{vSw}, 5, v4\nv_and_b32 v6, 4, v5\nv_add3_u32 v{vSw}, v{vSw}, v6, s{sT3}\nv_lshlrev_b32 v{vSr}, 2, v4")
        self.get_tag()
        SS, QQ, T = 16, 32, 56
        for o in range(8):
            a.wait_vm(f"x{o}")
            for hf in range(2):
                f = F + 64 * hf + 8 * o
                self.unpack(f, X + 8 * o + 4 * hf, 4)
                for i in range(4):
                    if hf == 0 and i == 0:
                        a(f"v_pk_add_f32 {vr(T,2)}, {vr(f,2)}, {vr(f+2,2)}\nv_pk_mul_f32 {vr(T+2,2)}, {vr(f,2)}, {vr(f,2)}")
                    else:
                        if not (hf == 0 and i == 1): a(f"v_pk_add_f32 {vr(T,2)}, {vr(T,2)}, {vr(f+2*i,2)}")
                        a(f"v_pk_fma_f32 {vr(T+2,2)}, {vr(f+2*i,2)}, {vr(f+2*i,2)}, {vr(T+2,2)}")
            a(f"v_add_f32 v{SS+o}, v{T}, v{T+1}\nv_add_f32 v{QQ+o}, v{T+2}, v{T+3}")
        a.wait_vm("w0")
        self.stamp(1)
        a("s_barrier")
        Z = 40
        for o in range(8): a(f"v_add_f32_dpp v{Z+o}, v{SS+o}, v{SS+o} row_half_mirror row_mask:0xf bank_mask:0x5")
        for o in range(8): a(f"v_add_f32_dpp v{Z+o}, v{QQ+o}, v{QQ+o} row_half_mirror row_mask:0xf bank_mask:0xa")
        for mode in ("quad_perm:[1,0,3,2]", "quad_perm:[2,3,0,1]"):
            for o in range(8): a(f"v_add_f32_dpp v{Z+o}, v{Z+o}, v{Z+o} {mode} row_mask:0xf bank_mask:0xf")
        for o in range(8): a.ds(f"ds_write_b32 v{vSw}, v{Z+o} offset:{STL+o*256}")
        a(f"v_lshlrev_b32 v6, 5, v{vL}")
        a.wait_lg(None)
        a("s_barrier")
        a.ds(f"ds_read_b128 {vr(32,4)}, v6 offset:{STL}")
        a.ds(f"ds_read_b128 {vr(36,4)}, v6 offset:{STL+16}")
        for n in (1, 2, 3): self.wdma(n)
        a.wait_lg(None)
        a(f"v_pk_add_f32 v[32:33], v[32:33], v[34:35]\nv_pk_add_f32 v[36:37], v[36:37], v[38:39]\nv_pk_add_f32 v[32:33], v[32:33], v[36:37]")
        a(f"v_mul_f32 v32, {hex(f2u(-1/512))}, v32\nv_mul_f32 v33, {hex(f2u(1/512))}, v33")
        a(f"v_fma_f32 v33, -v32, v32, v33\nv_max_f32 v33, 0, v33\nv_add_f32 v33, {hex(f2u(1e-5))}, v33")
        a(f"v_rsq_f32 v33, v33\nv_mul_f32 v32, v32, v33")
        for o in range(8):
            a.ds(f"ds_bpermute_b32 v{NR+2*o}, v{vSr}, v33 offset:{o*32}", f"n{o}")
            a.ds(f"ds_bpermute_b32 v{NR+2*o+1}, v{vSr}, v32 offset:{o*32}", f"n{o}")
        for o in range(8):
            a.wait_lg(f"n{o}")
            for hf in range(2):
                f = F + 64 * hf + 8 * o
                for i in range(4):
                    a(f"v_pk_fma_f32 {vr(f+2*i,2)}, {vr(f+2*i,2)}, {vr(NR+2*o,2)}, {vr(NR+2*o,2)} op_sel:[0,0,1] op_sel_hi:[1,0,1]")
        def hrow(hf, o):
            d = MD[hf]; f = F + 64 * hf + 8 * o
            if hf == 0:
                for i in range(4): a(f"v_pk_fma_f32 {vr(f+2*i,2)}, {vr(f+2*i,2)}, {vr(d+8+2*i,2)}, {vr(d+2*i,2)}")
            else:
                for i in range(8): a(f"v_fma_f32 v{f+i}, v{f+i}, v{d+8+i}, v{d+i}")
            for i in range(4): a(f"v_cvt_pk_bf16_f32 v{f+i}, v{f+2*i}, v{f+2*i+1}")
            a.ds(f"ds_write_b128 v{vH0+(o&1)}, {vr(f,4)} offset:{hf*32768+o*1024}")
        self.stamp(2)
        a("s_barrier")
        self.stamp(3)
        for hf in range(2):
            for k, off in enumerate((0, 16, 2048, 2064)): a.ds(f"ds_read_b128 {vr(MD[hf]+4*k,4)}, v{vMa+hf} offset:{MODL+off}", f"md{hf}")
        a.wait_lg("md0")
        for o in range(8): hrow(0, o)
        a.wait_lg(None)
        a("s_barrier")
        self.stamp(4)
        if self.opts.get("hprio", "1") == "1": a("s_setprio 1")
        for n in range(7):
            if 1 <= n <= 4: self.wdma(n + 3)
            if n <= 3:
                hrow(1, 2 * n); hrow(1, 2 * n + 1)
            if n == 3: a.wait_lg(None)
            if n == 4: self.rl_setup()
            a.wait_vm(f"w{n+1}")
            a("s_barrier")
            if n == 4:
                a(f"v_mov_b32 v4, {RLCNT}\nv_mov_b32 v5, 0")
                a.ds("ds_write_b32 v4, v5")
                a.wait_lg(None)
            if n == int(self.opts.get("rlat", -1)): self.rl_issue(range(4))
        a("s_barrier")
        self.stamp(5)

    def rl_setup(self):
        a = self.a
        vL, vL16 = 0, 2
        sU, sP, sDst, sSA, sSB, sDA, sDB, sSrc, sNF = RLS
        Lb, Lj = a.newlabel("rl_w1"), a.newlabel("rl_j")
        vRo, vRa = RLV, RLV + 1
        t0, t1, t2 = 4, 5, 6
        a(f"s_lshl_b32 s{sU}, s{sT5}, 5\ns_add_u32 s{sU}, s{sU}, s{sR}\ns_mov_b32 s{S_RL+3}, 0x20000")
        a(f"s_cmp_ge_u32 s{sU}, 60\ns_cbranch_scc1 {Lb}")
        a(f"""s_cmp_ge_u32 s{sU}, 16
s_cselect_b32 s{S_RL}, s{S_PW2}, s{S_PWO}
s_cselect_b32 s{S_RL+1}, s{S_PW2+1}, s{S_PWO+1}
s_cselect_b32 s{S_RL+2}, {1376*1024}, 0
s_cselect_b32 s{sT0}, 16, 0
s_cselect_b32 s{sDB}, 88, 32
s_cselect_b32 s{sDst}, {W2I - WOI}, 0
s_max_u32 s{S_RL+2}, s{S_RL+2}, {512*1024}
s_add_u32 s{sDst}, s{sDst}, {WOI}
s_lshl_b32 s{sDB}, s{sDB}, 10
s_sub_u32 s{sT0}, s{sU}, s{sT0}
s_mov_b32 s{sP}, 8192
s_lshl_b32 s{sSrc}, s{sT0}, 15
s_lshl_b32 s{sT2}, s{sJ}, 7
s_add_u32 s{sSrc}, s{sSrc}, s{sT2}
s_mul_i32 s{sT2}, s{sJ}, s{sDB}
s_lshl_b32 s{sT2}, s{sT2}, 1
s_add_u32 s{sDst}, s{sDst}, s{sT2}
s_lshl_b32 s{sT2}, s{sT0}, 11
s_add_u32 s{sDst}, s{sDst}, s{sT2}
s_mov_b32 s{sDA}, 1024
s_mov_b32 s{sSA}, 2048
s_mov_b32 s{sSB}, 256
s_mov_b32 s{sNF}, 4""")
        self.dma_lane_off(vRo, vL, t0, t1, 1024)
        a(f"v_lshrrev_b32 v{t0}, 5, v{vL}\nv_lshlrev_b32 v{vRa}, 10, v{t0}")
        a(f"v_bfe_u32 v{t0}, v{vL}, 4, 1\nv_lshl_add_u32 v{vRa}, v{t0}, 5, v{vRa}")
        a(f"v_and_b32 v{t0}, 1, v{vL}\nv_lshl_add_u32 v{vRa}, v{t0}, 4, v{vRa}")
        a(f"v_bfe_u32 v{t0}, v{vL}, 1, 1\nv_lshl_add_u32 v{vRa}, v{t0}, 3, v{vRa}")
        a(f"s_branch {Lj}")
        a.label(Lb)
        a(f"""s_mov_b32 s{S_RL}, s{S_PW1}
s_mov_b32 s{S_RL+1}, s{S_PW1+1}
s_cmp_lt_u32 s{sU}, 108
s_cselect_b32 s{S_RL+2}, {512*2752}, 0
s_sub_u32 s{sT0}, s{sU}, 60
s_and_b32 s{sT1}, s{sT0}, 15
s_lshr_b32 s{sT0}, s{sT0}, 4
s_mov_b32 s{sP}, {8*2752}
s_mul_i32 s{sT3}, s{sJ}, 11
s_lshl_b32 s{sT2}, s{sT0}, 2
s_add_u32 s{sT3}, s{sT3}, s{sT2}
s_mul_i32 s{sSrc}, s{sT1}, {32*2752}
s_lshl_b32 s{sT2}, s{sT3}, 5
s_add_u32 s{sSrc}, s{sSrc}, s{sT2}
s_lshl_b32 s{sDst}, s{sT3}, 14
s_lshl_b32 s{sT1}, s{sT1}, 10
s_add_u32 s{sDst}, s{sDst}, s{sT1}
s_add_u32 s{sDst}, s{sDst}, {W1I}
s_mov_b32 s{sDA}, 32768
s_mov_b32 s{sDB}, 16384
s_mov_b32 s{sSA}, 256
s_mov_b32 s{sSB}, 32
s_cmp_eq_u32 s{sT0}, 2
s_cselect_b32 s{sNF}, 3, 4
s_sub_u32 s{sT2}, 2752, s{sT2}""")
        self.dma_lane_off(vRo, vL, t0, t1, 2752)
        a(f"v_bfe_u32 v{t0}, v{vL}, 4, 1\nv_lshlrev_b32 v{t0}, 6, v{t0}\nv_and_b32 v{t1}, 3, v{vL}\nv_lshl_add_u32 v{t0}, v{t1}, 4, v{t0}")
        a(f"v_cmp_le_i32 vcc, s{sT2}, v{t0}\nv_mov_b32 v{t0}, 0x400000\nv_cndmask_b32 v{vRo}, v{vRo}, v{t0}, vcc")
        a(f"v_lshrrev_b32 v{t0}, 4, v{vL}\nv_lshlrev_b32 v{vRa}, 10, v{t0}")
        a(f"v_lshl_add_u32 v{vRa}, v{t1}, 3, v{vRa}")
        a.label(Lj)
        a(f"v_bfe_u32 v{t0}, v{vL}, 2, 2\nv_lshl_add_u32 v{vRa}, v{t0}, 6, v{vRa}")
        a(f"s_lshl_b32 s{sT0}, s{sT5}, 12\ns_add_u32 s{sU2}, s{sT0}, {RLST}\nv_add_u32 v{vRa}, s{sU2}, v{vRa}")
        a(f"v_add_u32 v{vRa+1}, s{sSB}, v{vRa}\nv_add_u32 v{vRa+2}, s{sSA}, v{vRa}\nv_add_u32 v{vRa+3}, s{sSA}, v{vRa+1}")

    def rl_issue(self, octets):
        a = self.a
        sU, sP, sDst, sSA, sSB, sDA, sDB, sSrc, sNF = RLS
        for o in octets:
            a(f"s_add_u32 m0, s{sU2}, {o*1024}")
            a.vmem(f"buffer_load_dwordx4 v{RLV}, {sr(S_RL,4)}, s{sSrc} offen{self.nt} lds", "rl")
            if o < 3: a(f"s_add_u32 s{sSrc}, s{sSrc}, s{sP}")
    def rl_read(self):
        a = self.a
        a.wait_vm("rl")
        for f in range(4):
            for kq in range(2):
                a.ds(f"ds_read_b64_tr_b16 {vr(RLT+4*f+2*kq,2)}, v{RLV+1+f} offset:{kq*512}", "rt")
    def rl_store(self):
        a = self.a
        sU, sP, sDst, sSA, sSB, sDA, sDB, sSrc, sNF = RLS
        Ls = a.newlabel("norl2")
        a.wait_lg("rt")
        a(f"s_cmp_ge_u32 s{sU}, 108\ns_cbranch_scc1 {Ls}")
        a(f"s_add_u32 s{sSA}, s{sDst}, s{sDB}\ns_add_u32 s{sSB}, s{sDst}, s{sDA}\ns_add_u32 s{sP}, s{sSA}, s{sDA}")
        for f, sd in enumerate((sDst, sSA, sSB, sP)):
            if f == 3: a(f"s_cmp_eq_u32 s{sNF}, 3\ns_cbranch_scc1 {Ls}")
            a.vmem(f"buffer_store_dwordx4 {vr(RLT+4*f,4)}, v2, {sr(S_WS,4)}, s{sd} offen sc1", "rs", cond=True)
        a.label(Ls)

    def end(self):
        a = self.a
        if self.opts.get("echo") or self.opts.get("delay"):
            L = a.newlabel("echo")
            if self.opts.get("echo"):
                a(f"s_sub_u32 s100, s101, s100\ns_mul_i32 s100, s100, {int(self.opts.get('mult', 1))}\ns_min_u32 s100, s100, 100000")
                a(f"s_memrealtime {sr(sST,2)}\ns_waitcnt lgkmcnt(0)\ns_mov_b32 s101, s{sST}")
                a.label(L)
                a(f"s_memrealtime {sr(sST,2)}\ns_waitcnt lgkmcnt(0)\ns_sub_u32 s{sST}, s{sST}, s101\ns_cmp_lt_u32 s{sST}, s100\ns_cbranch_scc1 {L}")
            else:
                a(f"s_memtime {sr(sST,2)}\ns_waitcnt lgkmcnt(0)\ns_mov_b32 s101, s{sST}")
                a.label(L)
                a(f"s_memtime {sr(sST,2)}\ns_waitcnt lgkmcnt(0)\ns_sub_u32 s{sST}, s{sST}, s101\ns_cmp_lt_u32 s{sST}, {int(self.opts['delay'])}\ns_cbranch_scc1 {L}")
        self.flush_stamps()
        self.a("s_endpgm")

    def role(self, r):
        a = self.a
        a.vm = []; a.lg = []
        self.vstamp = 1
        if self.stamps: a(f"v_mov_b32 v{self.vstamp}, 0")
        self.stamp(0)
        (self.p1_M if r == "M" else self.p1_H)()
        if self.stop_after == 1: return self.end()
        from phases import p2, p3, p4, p5
        p2(self, r)
        if self.stop_after == 2: return self.end()
        p3(self, r)
        if self.stop_after == 3: return self.end()
        p4(self, r)
        if self.stop_after == 4: return self.end()
        p5(self, r)
        self.end()

    def build(self):
        a = self.a
        self.prologue()
        self.role("M")
        a.label("L_H")
        self.role("H")
        a.label("L_exit")
        a("s_endpgm")
        a.label("L_code_end")
        rep = []
        body, added = fix_hazards(a.L, rep)
        self.hazard_report = rep
        hdr = open("adaLN_cond__softmax_full_mha__dense_activation_relu__prompt.s.ref").read().split("; Override launch")[0]
        pre = int(self.opts.get("empty", 0)); post = int(self.opts.get("emptypost", 0))
        if pre or post:
            src = hdr + "; @launch kernel=empty_kernel grid=(256,1,1) block=(64,1,1) lds=0\n" * pre + f"; @launch kernel={KNAME} grid=(256,1,1) block=(512,1,1) lds={LDSSZ}\n" + "; @launch kernel=empty_kernel grid=(256,1,1) block=(64,1,1) lds=0\n" * post
            body = body + [".globl empty_kernel", ".p2align 8", ".type empty_kernel,@function", "empty_kernel:", "    s_endpgm"]
        else:
            src = hdr + f"; @launch grid=(256,1,1) block=(512,1,1) lds={LDSSZ}\n"
        src += f'.amdgcn_target "amdgcn-amd-amdhsa--gfx950"\n.text\n.globl {KNAME}\n.p2align 8\n.type {KNAME},@function\n{KNAME}:\n'
        src += "\n".join(body) + "\n"
        src += f""".section .rodata,"a"
.p2align 6
.amdhsa_kernel {KNAME}
  .amdhsa_next_free_vgpr 256
  .amdhsa_next_free_sgpr 102
  .amdhsa_accum_offset 256
  .amdhsa_group_segment_fixed_size 0
  .amdhsa_kernarg_size 88
  .amdhsa_user_sgpr_count 2
  .amdhsa_user_sgpr_kernarg_segment_ptr 1
  .amdhsa_system_sgpr_workgroup_id_x 1
.end_amdhsa_kernel
"""
        if pre or post:
            src += """.p2align 6
.amdhsa_kernel empty_kernel
  .amdhsa_next_free_vgpr 8
  .amdhsa_next_free_sgpr 16
  .amdhsa_accum_offset 8
  .amdhsa_group_segment_fixed_size 0
  .amdhsa_kernarg_size 88
  .amdhsa_user_sgpr_count 2
  .amdhsa_user_sgpr_kernarg_segment_ptr 1
  .amdhsa_system_sgpr_workgroup_id_x 1
.end_amdhsa_kernel
"""
        return src

if __name__ == "__main__":
    import argparse
    ap = argparse.ArgumentParser()
    ap.add_argument("-o", default="out.s")
    ap.add_argument("--stamps", action="store_true")
    ap.add_argument("--stop", type=int, default=None)
    ap.add_argument("--slow", action="store_true")
    ap.add_argument("--rep", action="store_true")
    ap.add_argument("--opt", action="append", default=[])
    args = ap.parse_args()
    g = Gen(stamps=args.stamps, stop_after=args.stop, force_slow=args.slow, opts=dict(o.split("=") for o in args.opt))
    s = g.build()
    open(args.o, "w").write(s)
    if args.rep:
        for r in g.hazard_report: print(r)
    print("wrote", args.o, len(s), "bytes;", len(g.hazard_report), "nops inserted", file=sys.stderr)
```

```python
from dsl import *
from mega import *

vL, vL16 = 0, 2
vXoff, vBoff = 6, 7
B1 = 128
BO = 80
XR = 56
X2 = 8
ACC = 16
UX, UY = 112, 120
RSTD = 108
RC = 104
sXO = sLN
sCO = sLN + 1
sB2a, sB2b = sLN + 2, sLN + 3
sBOa, sBOb = sLN + 4, sLN + 5
sFP, sFW = sLN + 19, sLN + 20
sLP, sLW = sLN + 21, sLN + 22
LFLAG2, LFLAG4 = 1024, 1152
P4_ORDER = [2 * k for k in range(8)] + [2 * k + 1 for k in range(8)]

B2REG = [192 + 4 * f for f in range(16)] + [96, 100, 116, 120, 124] + [B1 + 4 * k for k in P4_ORDER] + [80, 84, 88, 92, 104, 108, 112]

def ld_b2(g, f):
    a = g.a
    m, e = f >> 2, f & 3
    a(f"s_add_u32 s{sT4}, s{sB2a}, {(22 * e + (m & ~3)) * 1024}")
    a.vmem(f"buffer_load_dwordx4 {vr(B2REG[f],4)}, v{vL16}, {sr(S_WS,4)}, s{sT4} offen offset:{(m&3)*1024} sc1", f"b2_{f}")

def boreg(role, f):
    return 192 + 4 * f if f < 16 else 80 + 4 * (f & 7)

def ld_bo(g, role, f):
    a = g.a
    a(f"s_add_u32 s{sT4}, s{sBOa}, {(f & 7) * 4096}")
    a.vmem(f"buffer_load_dwordx4 {vr(boreg(role,f),4)}, v{vBoff}, {sr(S_WS,4)}, s{sT4} offen offset:{(f >> 3)*1024} sc1", "bo")

def gemm_setup(g):
    a = g.a
    a(f"s_lshl_b32 s{sT2}, s{sR}, 3\ns_add_u32 s{sFP}, s{sT2}, s{sJ}\ns_lshl_b32 s{sFP}, s{sFP}, 7\ns_add_u32 s{sFW}, s{sT2}, s{sW}\ns_lshl_b32 s{sFW}, s{sFW}, 7")
    a(f"s_mul_i32 s{sLP}, s{sFP}, 10\ns_add_u32 s{sLP}, s{sLP}, {LREC}\ns_mul_i32 s{sLW}, s{sFW}, 10\ns_add_u32 s{sLW}, s{sLW}, {LREC}")
    a(f"s_lshr_b32 s{sT2}, s{sW}, 2\ns_lshl_b32 s{sT3}, s{sT2}, 8\nv_xor_b32 v{vBoff}, s{sT3}, v{vL16}")
    a(f"s_and_b32 s{sT4}, s{sW}, 1\ns_lshl_b32 s{sCO}, s{sT4}, 6\ns_lshl_b32 s{sT2}, s{sT2}, 5\ns_add_u32 s{sCO}, s{sCO}, s{sT2}")
    a(f"v_lshrrev_b32 v5, 5, v{vL}\nv_lshlrev_b32 v5, 4, v5\nv_and_b32 v{vXoff}, 31, v{vL}\nv_lshl_add_u32 v{vXoff}, v{vXoff}, 10, v5")
    a(f"s_lshl_b32 s{sXO}, s{sR}, 1\ns_bfe_u32 s{sT2}, s{sW}, 0x10001\ns_add_u32 s{sXO}, s{sXO}, s{sT2}\ns_lshl_b32 s{sXO}, s{sXO}, 15")
    a(f"s_lshl_b32 s{sT2}, s{sJ}, 7\ns_add_u32 s{sXO}, s{sXO}, s{sT2}\ns_add_u32 s{sXO}, s{sXO}, s{sCO}")
    a(f"s_lshl_b32 s{sT2}, s{sJ}, 1\ns_add_u32 s{sT2}, s{sT2}, s{sT4}\ns_lshr_b32 s{sT3}, s{sW}, 1")
    a(f"s_lshl_b32 s{sBOa}, s{sT2}, 15\ns_add_u32 s{sBOa}, s{sBOa}, {WOI}\ns_and_b32 s{sT3}, s{sT3}, 1")
    a(f"s_mul_i32 s{sB2a}, s{sT2}, {88*1024}\ns_mul_i32 s{sT3}, s{sT3}, {11*1024}\ns_add_u32 s{sB2a}, s{sB2a}, s{sT3}\ns_add_u32 s{sB2a}, s{sB2a}, {W2I}")

def p2(g, role):
    a = g.a
    vV, vIdx = 3, 4
    Q0, Q1, O0, O1, S0, S1, KR, VR = 8, 12, 16, 32, 48, 64, 80, 112
    NLOC = 4
    t0, t1 = 5, 48
    par = 1 if role == "H" else 0
    opt = lambda k, d: int(g.opts.get(k, d))
    gemm_setup(g)
    if role == "H":
        a(f"s_setprio 0\ns_lshl_b32 s{sT1}, s{sW}, 10\ns_add_u32 m0, s{sT1}, {XPL}\ns_sub_u32 s{sT2}, s{sXO}, 32")
        a.vmem(f"buffer_load_dwordx4 v{vXoff}, {sr(S_X,4)}, s{sXO} offen lds")
        a(f"s_add_u32 m0, s{sT1}, {XPL - 4096}")
        a.vmem(f"buffer_load_dwordx4 v{vXoff}, {sr(S_X,4)}, s{sT2} offen lds")
    sKF, sMASK, sVL, sGL = sLN + 6, sLN + 7, sLN + 17, sLN + 23
    a(f"s_and_b32 s{sT1}, s{sW}, 3")
    a(f"s_lshl_b32 s{sT0}, s{sJ}, 2\ns_add_u32 s{sT0}, s{sT0}, s{sT1}\ns_lshl_b32 s{sKVB}, s{sT0}, 17\ns_add_u32 s{sKVB}, s{sKVB}, {KV + par*2048}")
    a(f"s_lshl_b32 s{sKF}, s{sT0}, 12\ns_add_u32 s{sKF}, s{sKF}, {FLAG1}")
    a(f"s_lshl_b32 s{sVL}, s{sW}, 13\ns_add_u32 s{sVL}, s{sVL}, {VRING}")
    a(f"v_lshrrev_b32 v{t0}, 5, v{vL}\nv_and_b32 v{t1}, 15, v{vL}\nv_lshlrev_b32 v{t1}, 4, v{t1}\nv_lshl_add_u32 v{vV}, v{t0}, 8, v{t1}\nv_add_u32 v{vV}, s{sVL}, v{vV}")
    a(f"v_mov_b32 v{vIdx}, 0xdddddddd")
    if role == "H":
        a(f"s_lshl_b32 s{sT2}, s{sT1}, 11\ns_add_u32 s{sT2}, s{sT2}, {QX}\nv_add_u32 v{t0}, s{sT2}, v{vL16}")
        a.ds(f"ds_read_b128 {vr(Q0,4)}, v{t0} offset:1024")
        a.ds(f"ds_read_b128 {vr(Q1,4)}, v{t0}")
    for i in range(32): a(f"v_mov_b32 v{O0+i}, 0")
    a(f"v_and_b32 v{t1}, 27, v{vL}\nv_cmp_eq_u32 vcc, 16, v{t1}\nv_mov_b32 v{t1}, 0x3f803f80\nv_cndmask_b32 v{t1}, 0, v{t1}, vcc")
    for i in range(16): a(f"v_mov_b32 v{VR+i}, v{t1}")
    D = opt("dist", 6)
    issue = {n: [] for n in range(32)}; t = NLOC
    for n in range(1, 32):
        while len(issue[n]) < 2 and t < 32 and t <= n + D: issue[n].append(t); t += 1
    assert D <= 7 and t == 32
    if role == "H":
        a(f"s_mul_i32 s{sB1}, s{sJ}, 11\ns_add_u32 s{sB1}, s{sB1}, s{sT1}")
    else:
        a(f"s_mul_i32 s{sB1}, s{sJ}, 11\ns_min_u32 s{sT2}, s{sT1}, 2\ns_add_u32 s{sB1}, s{sB1}, s{sT2}\ns_add_u32 s{sB1}, s{sB1}, 8")
    a(f"s_lshl_b32 s{sB1b}, s{sB1}, 14\ns_add_u32 s{sB1b}, s{sB1b}, {W1I}")
    FLA, FLG, FKV = 252, 253, 254
    a(f"s_add_u32 s{sT5}, s{sKF}, {LFLAG1 - FLAG1}\ns_and_b32 s{sKVO}, s{sR}, 28")
    a(f"v_add_u32 v{FLA}, s{sKVO}, v{vL}\nv_and_b32 v{FLA}, 31, v{FLA}\nv_lshlrev_b32 v{FLA}, 7, v{FLA}\ns_lshl_b32 s{sKVO}, s{sKVO}, 12")
    a.wait_lg(None)
    ldflags = f"buffer_load_dword v{FKV}, v{FLA}, {sr(S_WS,4)}, s{sKF} offen sc1"
    def repoll(bits, name):
        L = a.newlabel("rp_" + name); Ld = a.newlabel("rpd_" + name)
        a(f"s_mov_b32 s{sCNT}, {POLL_LIMIT}")
        a.label(L)
        a(ldflags)
        a(f"s_sub_u32 s{sCNT}, s{sCNT}, 1\ns_cmp_eq_u32 s{sCNT}, 0\ns_waitcnt vmcnt(0)\ns_cbranch_scc1 {Ld}")
        a(f"v_cmp_ne_u32 vcc, s{sTAG}, v{FKV}\ns_mov_b32 s{sMASK}, vcc_lo\ns_and_b32 s{sT4}, vcc_lo, {hex(bits)}\ns_cbranch_scc1 {L}")
        a.label(Ld)
    LAZY = opt("lazy", 8)
    a("s_mov_b64 exec, 15")
    poll2(g, lambda s: f"buffer_load_dword v{FKV}, v{FLA}, {sr(S_WS,4)}, s{s} offen sc1", sT5, sKF, [FKV], "kv0")
    a("s_mov_b64 exec, -1")
    ool = []
    def need(n):
        if n < NLOC or n > LAZY + NLOC: return
        if n == NLOC:
            a.wait_vm("fkv")
            a(f"v_cmp_ne_u32 vcc, s{sTAG}, v{FKV}\ns_mov_b32 s{sMASK}, vcc_lo")
        bits = (1 << n) if n < LAZY + NLOC else (0xffffffff << n) & 0xffffffff
        Lo, Lb = a.newlabel("kvw"), a.newlabel("kvb")
        a(f"s_and_b32 s{sT4}, s{sMASK}, {hex(bits)}\ns_cbranch_scc1 {Lo}")
        a.label(Lb)
        ool.append((Lo, Lb, bits))
    g.stamp(8)
    kreg = lambda n: KR + 4 * (n % 8)
    vreg = lambda n: VR + 8 * (n & 1)
    def ldK(n):
        a(f"s_add_u32 s{sT0}, s{sKVB}, s{sKVO}")
        a.vmem(f"buffer_load_dwordx4 {vr(kreg(n),4)}, v{vL16}, {sr(S_WS,4)}, s{sT0} offen sc1", f"k{n}")
    def ldV(n):
        a(f"s_add_u32 m0, s{sVL}, {(n % 8) * 1024 - 1024}\ns_add_u32 s{sKVO}, s{sKVO}, 4096")
        a.vmem(f"buffer_load_dwordx4 v{vL16}, {sr(S_WS,4)}, s{sT0} offen offset:1024 sc1 lds", f"v{n}")
    wrap = f"s_and_b32 s{sKVO}, s{sKVO}, 0x1ffff"
    def rdV(n):
        a.wait_vm(f"v{n}")
        a(f"s_mov_b64 exec, {sr(sVM,2)}")
        a.ds(f"ds_read_b128 {vr(vreg(n),4)}, v{vV} offset:{(n % 8) * 1024}", f"V{n}")
        a.ds(f"ds_read_b128 {vr(vreg(n)+4,4)}, v{vV} offset:{(n % 8) * 1024 + 512}", f"V{n}")
        a("s_mov_b64 exec, -1")
    for n in range(NLOC):
        ldK(n); ldV(n)
    a(wrap)
    a.vmem(ldflags, "fkv")
    def rl_post():
        a.wait_vm("rs")
        Ls = a.newlabel("notlast")
        a(f"v_mov_b32 v{S0}, {RLCNT}\nv_mov_b32 v{S0+1}, 1\ns_mov_b64 exec, 1")
        a.ds(f"ds_add_rtn_u32 v{S0+1}, v{S0}, v{S0+1}")
        a(f"s_mov_b64 exec, -1\ns_lshl_b32 s{sT1}, s{sJ}, 5\ns_add_u32 s{sT1}, s{sT1}, s{sR}\ns_lshl_b32 s{sT1}, s{sT1}, 7\ns_add_u32 s{sT1}, s{sT1}, {FLAG1B}")
        a.wait_lg(None)
        a(f"v_readfirstlane_b32 s{sT2}, v{S0+1}\ns_cmp_lg_u32 s{sT2}, 3\ns_cbranch_scc1 {Ls}")
        a(f"v_mov_b32 v{t0}, s{sTAG}\nv_lshlrev_b32 v{FLG}, 2, v{vL}\ns_mov_b32 exec_hi, 0")
        a.vmem(f"buffer_store_dword v{t0}, v{FLG}, {sr(S_WS,4)}, s{sT1} offen sc1", None, cond=True)
        a("s_mov_b64 exec, -1")
        a.label(Ls)
    if role == "H": rl_post()
    prio = {int(k): int(v) for k, v in (x.split(":") for x in g.opts.get("prio" + role, "0:3,15:2,27:1,31:0" if role == "M" else "0:3,22:2,29:1,31:0").split(",") if x)}
    a.wait_vm("k0")
    a(f"v_mfma_f32_32x32x16_bf16 {vr(S0,16)}, {vr(kreg(0),4)}, {vr(Q0,4)}, 0")
    rdV(0)
    def ex(S, lo, hi):
        for i in range(lo, hi): a(f"v_exp_f32 v{S+i}, v{S+i}")
    def smf(O, V, P): a(f"v_smfmac_f32_32x32x32_bf16 {vr(O,16)}, {vr(V,4)}, {vr(P,8)}, v{vIdx}")
    nb1 = 32
    side = [0]
    def ldside(cnt):
        for _ in range(cnt):
            n = side[0]
            if n >= nb1: return
            if "b1" in g.opts.get("skip", ""): side[0] += 1; continue
            if role == "M" and n >= 16:
                ld_bo(g, role, n - 16); side[0] += 1; continue
            if n and n % 4 == 0:
                a(f"s_add_u32 s{sB1b}, s{sB1b}, {4096 if n != 16 else 4096 + 3*16384}")
            a.vmem(f"buffer_load_dwordx4 {vr(B1+4*n,4)}, v{vL16}, {sr(S_WS,4)}, s{sB1b} offen offset:{(n&3)*1024} sc1", "bo")
            side[0] += 1
    ST_GV = opt("gv", 2)
    ST_LDF = opt("ldf" + role, 7 if role == "M" else 3); ST_CHK = ST_LDF + (3 if role == "M" else 1)
    GV = 200
    def touch():
        a(f"v_lshlrev_b32 v5, 7, v{vL}\ns_mov_b64 exec, 0x3ff")
        a.vmem(f"buffer_load_dword v5, v5, {sr(S_WS,4)}, s{sLP} offen sc1", None, cond=True)
        a("s_mov_b64 exec, -1")
    last_need = max(n for n in issue for t in issue[n] if t <= LAZY + NLOC)
    def side_job(n):
        skip = g.opts.get("skip", "")
        if "all" in skip: return
        if role == "M":
            def gi():
                a(f"s_add_u32 s{sGL}, s{sI}, 16")
                g.gemv_issue(GV, sGL, sU3, cond=True)
            if "gv" not in skip:
                if n == ST_GV: only(g, 3, gi)
                if ST_GV < n < ST_GV + 8: only(g, 3, lambda: g.gemv_octet(GV, sGL, n - ST_GV, True))
                if n == ST_GV + 12: only(g, 3, lambda: g.gemv_finish(GV, sU3, cond=True))
            if n == opt("touch", 22): only(g, 1, touch)
        G0 = opt("g" + role, 22 if role == "M" else 20)
        if role == "H":
            if n == G0:
                a(f"s_sub_u32 s{sT3}, s{sW}, 4\ns_lshl_b32 s{sGB}, s{sT3}, 10\ns_add_u32 s{sGB}, s{sGB}, {MODP + 1536*4}\ns_cmp_ge_u32 s{sW}, 6\ns_cselect_b32 s{sGA}, 1.0, 0")
                a(f"s_lshl_b32 s{sGS}, s{sT3}, 13\ns_add_u32 s{sGS}, s{sGS}, {GL}")
            if G0 <= n < G0 + 8: g.gather_dma(vL16, sGB, sGS, n - G0)
        else:
            def gi0():
                gg_addr(g)
                a(f"s_lshl_b32 s{sGB}, s{sJ}, 8\ns_add_u32 s{sGB}, s{sGB}, {MODP + 4096}\ns_mov_b32 s{sGS}, {GL + 32768}")
            if n == G0: only(g, 0, gi0)
            if G0 <= n < G0 + 8: only(g, 0, lambda: g.gather_dma(5, sGB, sGS, n - G0, True))
        fl = f"buffer_load_dword v{FLG}, v{FLA}, {sr(S_WS,4)}, s{sT1} offen sc1"
        if "chk" in skip: return
        if n == ST_LDF:
            a(f"s_lshl_b32 s{sT1}, s{sJ}, 12\ns_add_u32 s{sT1}, s{sT1}, {FLAG1B}")
            a.vmem(fl, "flg")
        if n == ST_CHK:
            a.wait_vm("flg")
            Lok = a.newlabel("f1bok")
            a(f"v_cmp_ne_u32 vcc, s{sTAG}, v{FLG}\ns_nop 0")
            a(f"s_cbranch_vccz {Lok}")
            st = a.save()
            g.poll([fl], [FLG], "f1b")
            a.restore(st)
            a.label(Lok)
    assert ST_CHK < 24
    span = 31 - ST_CHK
    for n in range(32):
        tl = issue[n]
        want = 0 if n <= ST_CHK else -(-nb1 * (n - ST_CHK) // span) - side[0]
        ex(S0, 0, 2)
        if n > 0: smf(O1, vreg(n - 1) + 4, S1 + 8)
        if n + 1 < 32: rdV(n + 1)
        ex(S0, 2, 5)
        a(f"v_mfma_f32_32x32x16_bf16 {vr(S1,16)}, {vr(kreg(n),4)}, {vr(Q1,4)}, 0")
        a.wait_lg(f"V{n}")
        ex(S0, 5, 10)
        smf(O0, vreg(n), S0)
        if tl:
            need(tl[0]); ldK(tl[0])
        if n >= 24: ld_bo(g, role, n if role == 'H' else n - 8)
        ex(S0, 10, 16)
        ex(S1, 0, 2)
        smf(O0, vreg(n) + 4, S0 + 8)
        if tl: ldV(tl[0])
        else: ldside(want // 2); want -= want // 2
        ex(S1, 2, 5)
        if n + 1 < 32: a(f"v_mfma_f32_32x32x16_bf16 {vr(S0,16)}, {vr(kreg(n+1),4)}, {vr(Q0,4)}, 0")
        if tl: a(wrap)
        ex(S1, 5, 10)
        smf(O1, vreg(n), S1)
        if n in prio: a(f"s_setprio {prio[n]}")
        for t in tl[1:]:
            need(t); ldK(t); ldV(t); a(wrap)
        side_job(n)
        ldside(want)
        ex(S1, 10, 16)
        if g.opts.get("astamp") and n in (7, 15, 23): g.stamp(21 + n // 8)
    a(f"s_mul_i32 s{sT2}, s{sW}, 2304\ns_add_u32 s{sT2}, s{sT2}, {CB}")
    smf(O1, vreg(31) + 4, S1 + 8)
    assert side[0] == nb1
    g.stamp(9)
    a(f"s_xor_b32 s{sT3}, s{sW}, 4\ns_mul_i32 s{sT3}, s{sT3}, 2304\ns_add_u32 s{sT3}, s{sT3}, {CB}")
    ca, cb_, cc, cd = S0, S0 + 1, S0 + 2, S0 + 3
    a(f"v_add_u32 v{ca}, s{sT2}, v{vL16}\nv_lshlrev_b32 v{cd}, 2, v{vL}\nv_add_u32 v{cb_}, s{sT2}, v{cd}\nv_add_u32 v{cc}, s{sT3}, v{vL16}\nv_add_u32 v{cd}, s{sT3}, v{cd}")
    a(f"s_lshl_b32 s{sT2}, s{sR}, 5\ns_lshl_b32 s{sT1}, s{sJ}, 2\ns_add_u32 s{sT2}, s{sT2}, s{sT1}\ns_and_b32 s{sT1}, s{sW}, 3\ns_add_u32 s{sT2}, s{sT2}, s{sT1}")
    a(f"s_lshl_b32 s{sT2}, s{sT2}, 11\ns_add_u32 s{sT2}, s{sT2}, {OIMG + par*1024}")
    a.ds(f"ds_write_b128 v{ca}, {vr(O1,4)}")
    a.ds(f"ds_write_b128 v{ca}, {vr(O1+4,4)} offset:1024")
    a.ds(f"ds_write_b32 v{cb_}, v{O1+8} offset:2048")
    a.wait_lg(None)
    a("s_barrier")
    if g.opts.get("s4"): g.stamp(28)
    a.ds(f"ds_read_b32 v{O1+8}, v{cd} offset:2048", "l")
    a.ds(f"ds_read_b128 {vr(O1,4)}, v{cc}")
    a.ds(f"ds_read_b128 {vr(O1+4,4)}, v{cc} offset:1024")
    a(f"s_mov_b32 s{sT0}, {hex(f2u(2.0**60))}")
    a.wait_lg("l")
    a(f"v_add_f32 v{O0+8}, v{O0+8}, v{O1+8}")
    Lfast = a.newlabel("fast")
    if not g.force_slow:
        a(f"v_cmp_nle_f32 vcc, {hex(f2u(2.0**-60))}, v{O0+8}")
        a(f"v_cmp_nge_f32 {sr(sPM,2)}, s{sT0}, v{O0+8}")
    a.wait_lg(None)
    for i in range(4): a(f"v_pk_add_f32 {vr(O0+2*i,2)}, {vr(O0+2*i,2)}, {vr(O1+2*i,2)}")
    if not g.force_slow:
        a(f"s_or_b64 vcc, vcc, {sr(sPM,2)}")
        a(f"s_cbranch_vccz {Lfast}")
    st = a.save()
    a(f"v_subrev_u32 v{vV}, s{sVL}, v{vV}")
    slow_path(g, par, Q0, O0, O1, S0, vV, vIdx)
    a(f"s_branch {Lfast}")
    for Lo, Lb, bits in ool:
        a.label(Lo)
        repoll(bits, "kv")
        a(f"s_branch {Lb}")
    a.restore(st)
    a.label(Lfast)
    a(f"v_rcp_f32 v{O0+8}, v{O0+8}")
    for i in range(4): a(f"v_pk_mul_f32 {vr(O0+2*i,2)}, {vr(O0+2*i,2)}, {vr(O0+8,2)} op_sel_hi:[1,0]")
    for i in range(4): a(f"v_cvt_pk_bf16_f32 v{52+i}, v{O0+2*i}, v{O0+2*i+1}")
    a.vmem(f"buffer_store_dwordx4 {vr(52,4)}, v{vL16}, {sr(S_WS,4)}, s{sT2} offen sc1", "os")
    if g.opts.get("s4"): g.stamp(29)
    a(f"s_lshl_b32 s{sT1}, s{sW}, 10\nv_add_u32 v4, s{sT1}, v{vL16}")
    a.ds(f"ds_read_b128 {vr(XR,4)}, v4 offset:{XPL}")
    if role == "H":
        g.gather_read(GG, sGS, 3)
        g.gather_finish(GG, vL16, sGB, sGA, "m2")
        a(f"s_lshl_b32 s{sT0}, s{sW}, 9\ns_add_u32 s{sT0}, s{sT0}, {MV - 2048}\nv_lshlrev_b32 v4, 3, v{vL}\nv_add_u32 v4, s{sT0}, v4")
        a.ds(f"ds_write_b64 v4, {vr(GG+4,2)}")
    else:
        def gf():
            g.gather_read(GG, sGS, 3)
            g.gather_finish(GG, 5, sGB, None, "gg")
            a(f"v_and_b32 v4, 31, v{vL}\nv_lshlrev_b32 v4, 3, v4\nv_add_u32 v4, {MV2}, v4")
            a.ds(f"ds_write_b64 v4, {vr(GG+4,2)}")
        only(g, 0, gf)
    a.wait_lg(None)
    g.unpack(X2, XR, 4)
    if g.opts.get("s4"): g.stamp(30)
    a.wait_vm(None)
    if g.opts.get("s4"): g.stamp(31)
    a("s_barrier")
    if role == 'M': post_flag(g, role, FLAG2, LFLAG2, 0)
    g.stamp(10)

GG = 16
sGB, sGA, sGS = sLN + 24, sLN + 18, sLN + 25
def gg_addr(g):
    g.a(f"v_bfe_u32 v5, v{vL}, 4, 1\nv_mul_u32_u24 v5, 5888, v5\nv_and_b32 v253, 31, v{vL}\nv_lshl_add_u32 v5, v253, 4, v5")

def only(g, w, fn):
    a = g.a
    Ls = a.newlabel("only")
    a(f"s_cmp_lg_u32 s{sW}, {w}\ns_cbranch_scc1 {Ls}")
    st = a.save()
    issued = []
    orig = a.vmem
    def rec(text, tag=None, cond=False):
        orig(text, tag, cond)
        if cond: issued.append((tag, True))
    a.vmem = rec
    fn()
    del a.vmem
    a.vm = st[0] + issued
    a.lg = st[1]
    a.label(Ls)

def ub_vectors(g, ct, FR=16):
    a = g.a
    vM = 5
    a(f"v_lshrrev_b32 v{UY}, 4, v{vL}\nv_lshlrev_b32 v{vM}, 4, v{UY}\nv_and_b32 v{UY}, 1, v{vL}\nv_xor_b32 v{UY}, 1, v{UY}\nv_lshl_add_u32 v{vM}, v{UY}, 10, v{vM}\nv_add_u32 v{vM}, {MV}, v{vM}")
    for k in range(12): a.ds(f"ds_read_b128 {vr(FR+4*k,4)}, v{vM} offset:{k*64}", f"m{k}")
    for ks in range(16):
        a.wait_lg(f"m{ks}")
        d = UY + 4 * (ks & 1)
        a(f"v_mfma_f32_16x16x32_bf16 {vr(d,4)}, {vr(FR+4*(ks%12),4)}, {vr(B1+64*ct+4*ks,4)}, {'0' if ks < 2 else vr(d,4)}")
        if ks < 4: a.ds(f"ds_read_b128 {vr(FR+4*ks,4)}, v{vM} offset:{(12+ks)*64}", f"m{12+ks}")
    a(f"v_cmp_gt_u32 vcc, 16, v{vL}")
    if True:
        u, b, h, d = UY + 4, UY + 5, UY + 6, UX + 4 * ct
        a(f"v_add_f32 v{u}, v{u}, v{UY}\nv_add_f32 v{b}, v{b}, v{UY+1}")
        a(f"v_cndmask_b32 v{u}, 0, v{u}, vcc\nv_cndmask_b32 v{b}, 0, v{b}, vcc")
        a(f"v_cvt_pk_bf16_f32 v{d+1}, v{u}, v{b}")
        g.unpack(h, d + 1, 1)
        a(f"v_sub_f32 v{u}, v{u}, v{h}\nv_sub_f32 v{b}, v{b}, v{h+1}")
        a(f"v_cvt_pk_bf16_f32 v{d}, v{h}, v{u}\nv_cvt_pk_bf16_f32 v{d+2}, v{b}, v{h+1}\nv_mov_b32 v{d+3}, 0")

def slow_path(g, par, Q0, O0, O1, S0, vV, vIdx):
    a = g.a
    K, V0, V1, NM, M = 12, 64, 68, O1, 72
    a.wait_vm(None)
    a(f"s_sub_u32 s{sT0}, s{sKVB}, {par*2048}\ns_mov_b32 s{sT1}, 64\nv_mov_b32 v{M}, 0xff800000")
    L1 = a.newlabel("slow1")
    a.label(L1)
    a(f"buffer_load_dwordx4 {vr(K,4)}, v{vL16}, {sr(S_WS,4)}, s{sT0} offen sc1\ns_add_u32 s{sT0}, s{sT0}, 2048\ns_waitcnt vmcnt(0)")
    a(f"v_mfma_f32_32x32x16_bf16 {vr(S0,16)}, {vr(K,4)}, {vr(Q0,4)}, 0")
    for i in range(8): a(f"v_max3_f32 v{M}, v{M}, v{S0+2*i}, v{S0+2*i+1}")
    a(f"s_sub_u32 s{sT1}, s{sT1}, 1\ns_cmp_lg_u32 s{sT1}, 0\ns_cbranch_scc1 {L1}")
    a(f"v_mov_b32 v{M+1}, v{M}\nv_permlane32_swap_b32 v{M}, v{M+1}\nv_max_f32 v{M}, v{M}, v{M+1}")
    for i in range(16): a(f"v_sub_f32 v{NM+i}, 0, v{M}\nv_mov_b32 v{O0+i}, 0")
    for i in range(8): a(f"v_mov_b32 v{V0+i}, 0x3f803f80")
    a(f"s_sub_u32 s{sT0}, s{sKVB}, {par*2048}\ns_mov_b32 s{sT1}, 64")
    L2 = a.newlabel("slow2")
    a.label(L2)
    a(f"buffer_load_dwordx4 {vr(K,4)}, v{vL16}, {sr(S_WS,4)}, s{sT0} offen sc1")
    a(f"s_mov_b64 exec, {sr(sVM,2)}")
    a(f"buffer_load_dwordx4 {vr(V0,4)}, v{vV}, {sr(S_WS,4)}, s{sT0} offen offset:1024 sc1")
    a(f"buffer_load_dwordx4 {vr(V1,4)}, v{vV}, {sr(S_WS,4)}, s{sT0} offen offset:1536 sc1")
    a(f"s_mov_b64 exec, -1\ns_add_u32 s{sT0}, s{sT0}, 2048\ns_waitcnt vmcnt(0)")
    a(f"v_mfma_f32_32x32x16_bf16 {vr(S0,16)}, {vr(K,4)}, {vr(Q0,4)}, {vr(NM,16)}")
    for i in range(16): a(f"v_exp_f32 v{S0+i}, v{S0+i}")
    a(f"v_smfmac_f32_32x32x32_bf16 {vr(O0,16)}, {vr(V0,4)}, {vr(S0,8)}, v{vIdx}")
    a(f"v_smfmac_f32_32x32x32_bf16 {vr(O0,16)}, {vr(V1,4)}, {vr(S0+8,8)}, v{vIdx}")
    a(f"s_sub_u32 s{sT1}, s{sT1}, 1\ns_cmp_lg_u32 s{sT1}, 0\ns_nop 7\ns_cbranch_scc1 {L2}")
    a("s_nop 7\ns_nop 7")

def post_flag(g, role, base, lbase, who=None):
    a = g.a
    Ls = a.newlabel("noflag")
    a(f"s_cmp_lg_u32 s{sW}, {'s%d' % sJ if who is None else who}\ns_cbranch_scc1 {Ls}")
    a(f"v_mov_b32 v5, s{sTAG}\nv_lshlrev_b32 v4, 2, v{vL}\ns_mov_b32 exec_hi, 0")
    a(f"s_add_u32 s{sT0}, s{sLP}, {lbase}")
    a.vmem(f"buffer_store_dword v5, v4, {sr(S_WS,4)}, s{sT0} offen", None, cond=True)
    a(f"s_add_u32 s{sT0}, s{sFP}, {base}")
    a.vmem(f"buffer_store_dword v5, v4, {sr(S_WS,4)}, s{sT0} offen sc1", None, cond=True)
    a("s_mov_b64 exec, -1")
    a.label(Ls)

def poll2(g, mk, s_l, s_g, cmps, name):
    a = g.a
    g.poll([f"s_and_b32 s{sT4}, s{sCNT}, 7", f"s_cmp_eq_u32 s{sT4}, {1 if g.opts.get('dual', '1') == '1' else 's%d' % sT4}", f"s_cselect_b32 s{sT4}, s{s_g}, s{s_l}", mk(sT4)], cmps, name)

def poll_pair(g, local, glob, cmps, name):
    a = g.a
    L = a.newlabel("pp_" + name); Lg = a.newlabel("ppg"); Lc = a.newlabel("ppc"); Ld = a.newlabel("ppd")
    a(f"s_mov_b32 s{sCNT}, {POLL_LIMIT}")
    a.label(L)
    a(f"s_and_b32 s{sT4}, s{sCNT}, 7\ns_cmp_eq_u32 s{sT4}, 1\ns_cbranch_scc1 {Lg}")
    for x in local: a(x)
    a(f"s_branch {Lc}")
    a.label(Lg)
    for x in glob: a(x)
    a.label(Lc)
    a(f"s_sub_u32 s{sCNT}, s{sCNT}, 1\ns_cmp_eq_u32 s{sCNT}, 0\ns_waitcnt vmcnt(0)\ns_cbranch_scc1 {Ld}")
    for n, v in enumerate(cmps):
        if n == 0: a(f"v_cmp_ne_u32 vcc, s{sTAG}, v{v}")
        else: a(f"v_cmp_ne_u32 {sr(sPM,2)}, v{v}, s{sTAG}\ns_or_b64 vcc, vcc, {sr(sPM,2)}")
    a(f"s_nop 0\ns_cbranch_vccnz {L}")
    a.label(Ld)
    a.vm = []

def wait_flags(g, base, lbase, name):
    a = g.a
    a(f"v_mul_u32_u24 v16, 512, v{vL}\nv_mul_u32_u24 v17, 5120, v{vL}")
    a(f"s_add_u32 s{sT0}, s{sFW}, {base - 512}\ns_add_u32 s{sT5}, s{sLW}, {lbase - 5120}\ns_mov_b64 exec, 3")
    poll_pair(g, [f"buffer_load_dword v5, v17, {sr(S_WS,4)}, s{sT5} offen sc1"], [f"buffer_load_dword v5, v16, {sr(S_WS,4)}, s{sT0} offen sc1"], [5], name)
    a("s_mov_b64 exec, -1")

def mod_piece_addr(g, dst, ldsbase, s_extra=None):
    a = g.a
    a(f"v_lshrrev_b32 v{dst}, 5, v{vL}\nv_lshlrev_b32 v{dst}, 4, v{dst}\ns_add_u32 s{sT0}, s{sCO}, {ldsbase}")
    if s_extra is not None: a(f"s_add_u32 s{sT0}, s{sT0}, s{s_extra}")
    a(f"v_add_u32 v{dst}, s{sT0}, v{dst}")

def slice_setup(g, img):
    g.a(f"s_and_b32 s{sT2}, s{sW}, 3\ns_lshl_b32 s{sT2}, s{sT2}, 13\ns_lshl_b32 s{sT3}, s{sR}, 16\ns_add_u32 s{sT3}, s{sT3}, s{sT2}\ns_add_u32 s{sT3}, s{sT3}, {img}")

def slice_dma(g, groups):
    a = g.a
    for k, ms in enumerate(groups):
        a(f"s_setprio {len(groups) - 1 - k}")
        for dw in (0, 4):
            o = dw * 8192 + ms[0] * 2048
            a(f"s_add_u32 m0, s{sT2}, {o}\ns_add_u32 s{sT4}, s{sT3}, {o}")
            for i in range(2 * len(ms)):
                a.vmem(f"buffer_load_dwordx4 v{vL16}, {sr(S_WS,4)}, s{sT4} offen offset:{i*1024} sc1 lds", f"a{k}")

def p3(g, role):
    a = g.a
    vA, vP = 3, 4
    GA, CBF, RAW, PP = 64, 72, 120, 104
    FA = 32
    nb2 = int(g.opts.get("nb2", 12))
    if role == "H":
        slice_setup(g, OIMG)
        wait_flags(g, FLAG2, LFLAG2, "o")
        g.stamp(11)
        slice_dma(g, [(0,), (1,), (2,), (3,)])
    else:
        ub_vectors(g, 0)
    a(f"""s_and_b32 s{sT5}, s{sW}, 1
s_lshl_b32 s{sT5}, s{sT5}, 1
s_lshr_b32 s{sT1}, s{sW}, 2
s_add_u32 s{sT5}, s{sT5}, s{sT1}
s_lshl_b32 s{sT1}, s{sJ}, 2
s_add_u32 s{sT1}, s{sT1}, s{sT5}
s_lshl_b32 s{sT2}, s{sR}, 5
s_add_u32 s{sT1}, s{sT1}, s{sT2}
s_lshl_b32 s{sT1}, s{sT1}, 1
s_bfe_u32 s{sT2}, s{sW}, 0x10001
s_add_u32 s{sT1}, s{sT1}, s{sT2}
s_lshl_b32 s{sT1}, s{sT1}, 10
s_add_u32 s{sT1}, s{sT1}, {XIMG}
s_lshl_b32 s{sT5}, s{sT5}, 10
s_lshl_b32 s{sT3}, s{sT2}, 8
s_add_u32 s{sT5}, s{sT5}, s{sT3}
s_add_u32 s{sT5}, s{sT5}, {ST1}
s_lshl_b32 s{sT2}, s{sT2}, 10""")
    a(f"v_add_u32 v{vA}, s{sT2}, v{vL16}")
    a(f"s_and_b32 s{sT0}, s{sW}, 3\ns_lshl_b32 s{sT0}, s{sT0}, 12\ns_add_u32 s{sT0}, s{sT0}, {RB3}\nv_add_u32 v{vP}, s{sT0}, v{vL16}")
    f0 = 0 if role == "M" else 24
    wr, rd_ = (0, 2048) if role == "M" else (2048, 0)
    def rd(f):
        a.ds(f"ds_read_b128 {vr(FA+4*(f&7),4)}, v{vA} offset:{(f&7)*8192+(f>>3)*2048}", f"f{f}")
    def mf(f):
        a.wait_lg(f"f{f}")
        c = "0" if f == f0 else vr(ACC, 16)
        a(f"v_mfma_f32_32x32x16_bf16 {vr(ACC,16)}, {vr(boreg(role,f),4)}, {vr(FA+4*(f&7),4)}, {c}")
    def pieces():
        mod_piece_addr(g, RAW, MV2)
        a(f"s_lshl_b32 s{sT3}, s{sJ}, 7")
        mod_piece_addr(g, RAW + 4, MV + 1024, sT3)
        a.ds(f"ds_read_b128 {vr(RAW,4)}, v{RAW}", "pc")
        a.ds(f"ds_read_b128 {vr(RAW+4,4)}, v{RAW+4}", "pc")
    def send():
        a.ds(f"ds_write_b128 v{vP}, {vr(ACC+8,4)} offset:{wr}")
        a.ds(f"ds_write_b128 v{vP}, {vr(ACC+12,4)} offset:{wr+1024}")
    def recv():
        a.ds(f"ds_read_b128 {vr(PP,4)}, v{vP} offset:{rd_}")
        a.ds(f"ds_read_b128 {vr(PP+4,4)}, v{vP} offset:{rd_+1024}")
    if role == "M":
        pieces()
        a.wait_lg(None)
        g.unpack(GA, RAW, 4); g.unpack(CBF, RAW + 4, 4)
    for m in range(4):
        a.wait_vm(f"a{m}")
        if g.opts.get("s3") and m == 0: g.stamp(23)
        a("s_barrier")
        if g.opts.get("s3") and role == "H": g.stamp(24 + m)
        if role == "M":
            if m == 0:
                for f in range(8): rd(f)
                for f in range(4): mf(f)
            elif m < 3:
                for f in range(8 * m - 4, 8 * m + 4): rd(f + 4) if f < 8 * m else None; mf(f); rd(f + 8) if f < 8 * m else None
            else:
                for f in range(20, 24): mf(f)
                Ls = a.newlabel("noep")
                a(f"s_add_u32 s{sT0}, s{sW}, s2\ns_cmp_lg_u32 s{sT0}, 0\ns_cbranch_scc1 {Ls}")
                a(f"v_mov_b32 v5, s{sTAG}\ns_mov_b64 exec, 1")
                a.vmem(f"buffer_store_dword v5, off, {sr(S_WS,4)}, 0 offset:{EPOCH} sc1", None, cond=True)
                a("s_mov_b64 exec, -1")
                a.label(Ls)
                for f in range(4): ld_b2(g, f)
                a("s_nop 1")
                send()
                for f in range(4, nb2): ld_b2(g, f)
        elif m == 0: pieces()
        elif m == 1: a.wait_lg(None); g.unpack(GA, RAW, 4)
        elif m == 2: g.unpack(CBF, RAW + 4, 4)
        elif m == 3:
            for f in range(24, 32): rd(f)
            for f in range(24, 32): mf(f)
            send()
    a.wait_lg(None)
    g.stamp(12)
    a("s_barrier")
    recv()
    a.wait_lg(None)
    for i in range(4): a(f"v_pk_add_f32 {vr(ACC+2*i,2)}, {vr(ACC+2*i,2)}, {vr(PP+2*i,2)}")
    for i in range(4): a(f"v_pk_fma_f32 {vr(X2+2*i,2)}, {vr(ACC+2*i,2)}, {vr(GA+2*i,2)}, {vr(X2+2*i,2)}")
    for i in range(4): a(f"v_pk_mul_f32 {vr(CBF+2*i,2)}, {vr(CBF+2*i,2)}, {vr(X2+2*i,2)}")
    for i in range(4): a(f"v_cvt_pk_bf16_f32 v{CBF+i}, v{CBF+2*i}, v{CBF+2*i+1}")
    a.vmem(f"buffer_store_dwordx4 {vr(CBF,4)}, v{vL16}, {sr(S_WS,4)}, s{sT1} offen sc1", "xs")
    T = GA
    a(f"v_pk_add_f32 {vr(T,2)}, {vr(X2,2)}, {vr(X2+2,2)}\nv_pk_mul_f32 {vr(T+2,2)}, {vr(X2,2)}, {vr(X2,2)}")
    a(f"v_pk_add_f32 {vr(T,2)}, {vr(T,2)}, {vr(X2+4,2)}\nv_pk_fma_f32 {vr(T+2,2)}, {vr(X2+2,2)}, {vr(X2+2,2)}, {vr(T+2,2)}")
    a(f"v_pk_add_f32 {vr(T,2)}, {vr(T,2)}, {vr(X2+6,2)}\nv_pk_fma_f32 {vr(T+2,2)}, {vr(X2+4,2)}, {vr(X2+4,2)}, {vr(T+2,2)}")
    a(f"v_add_f32 v{T}, v{T}, v{T+1}\nv_pk_fma_f32 {vr(T+2,2)}, {vr(X2+6,2)}, {vr(X2+6,2)}, {vr(T+2,2)}\nv_add_f32 v{T+1}, v{T+2}, v{T+3}")
    a(f"v_lshrrev_b32 v{T+2}, 5, v{vL}\nv_lshlrev_b32 v{T+2}, 8, v{T+2}\nv_lshl_add_u32 v{T+2}, v{vL}, 3, v{T+2}\nv_add_u32 v{T+2}, s{sT5}, v{T+2}")
    a.ds(f"ds_write_b64 v{T+2}, {vr(T,2)}")
    a.wait_lg(None)
    a("s_barrier")
    Ls = a.newlabel("nost")
    a(f"s_cmp_lg_u32 s{sW}, 4\ns_cbranch_scc1 {Ls}")
    a(f"v_lshlrev_b32 v{T+2}, 3, v{vL}\nv_add_u32 v{T+2}, {ST1}, v{T+2}")
    for i in range(8): a.ds(f"ds_read_b64 {vr(ACC+2*i,2)}, v{T+2} offset:{i*512}")
    a(f"s_lshl_b32 s{sT0}, s{sFP}, 3\ns_add_u32 s{sT0}, s{sT0}, {STAT}")
    a.wait_lg(None)
    for d, s in ((0, 1), (2, 3), (4, 5), (6, 7), (0, 2), (4, 6), (0, 4)):
        a(f"v_pk_add_f32 {vr(ACC+2*d,2)}, {vr(ACC+2*d,2)}, {vr(ACC+2*s,2)}")
    a(f"v_mov_b32 v{RC}, v{ACC}\nv_mov_b32 v{RC+2}, v{ACC+1}\nv_mov_b32 v{RC+1}, s{sTAG}\nv_mov_b32 v{RC+3}, s{sTAG}")
    a.label(Ls)
    a.wait_vm("xs")
    a("s_barrier")
    Ls = a.newlabel("nost2")
    a(f"s_cmp_lg_u32 s{sW}, 4\ns_cbranch_scc1 {Ls}")
    a.vmem(f"buffer_store_dwordx4 {vr(RC,4)}, v{vL16}, {sr(S_WS,4)}, s{sLP} offen", None, cond=True)
    a.vmem(f"buffer_store_dwordx4 {vr(RC,4)}, v{vL16}, {sr(S_WS,4)}, s{sT0} offen sc1", None, cond=True)
    a("s_nop 1")
    a.label(Ls)
    g.stamp(13)

def p4(g, role):
    a = g.a
    nt = 2 if role == "H" else 1
    vA, vM, vS, vR = 3, 4, 110, 111
    FR = 48; NS = 3
    ST = 64
    AL, BE = 96, 100
    nb2 = int(g.opts.get("nb2", 12))
    if role == "M":
        R2 = 64
        a(f"s_lshl_b32 s{sT0}, s{sFW}, 3\ns_add_u32 s{sT0}, s{sT0}, {STAT}\ns_add_u32 s{sT1}, s{sT0}, 4096\ns_add_u32 s{sT5}, s{sLW}, 5120")
        slice_setup(g, XIMG)
        ld = lambda r, s: f"buffer_load_dwordx4 {vr(r,4)}, v{vL16}, {sr(S_WS,4)}, s{s} offen sc1"
        poll_pair(g, [ld(R2, sLW), ld(R2 + 4, sT5)], [ld(R2, sT0), ld(R2 + 4, sT1)], [R2 + 1, R2 + 3, R2 + 5, R2 + 7], "st")
        g.stamp(14)
        slice_dma(g, [(0, 1), (2, 3)])
        a(f"s_lshl_b32 s{sT1}, s{sW}, 9\ns_add_u32 s{sT1}, s{sT1}, {ST2}\nv_lshlrev_b32 v{vM}, 3, v{vL}\nv_add_u32 v{vS}, s{sT1}, v{vM}\nv_add_u32 v{vM}, {ST2}, v{vM}")
        a(f"v_mov_b32 v{R2+1}, v{R2+2}\nv_mov_b32 v{R2+5}, v{R2+6}")
        a.ds(f"ds_write_b64 v{vS}, {vr(R2,2)}")
        a.ds(f"ds_write_b64 v{vS}, {vr(R2+4,2)} offset:2048")
    else:
        ub_vectors(g, 0); ub_vectors(g, 1)
    a(f"v_lshrrev_b32 v5, 4, v{vL}\nv_lshrrev_b32 v{vA}, 5, v{vL}\nv_lshlrev_b32 v{vA}, 11, v{vA}\nv_and_b32 v5, 1, v5\nv_lshl_add_u32 v{vA}, v5, 9, v{vA}\nv_and_b32 v5, 15, v{vL}\nv_lshl_add_u32 v{vA}, v5, 4, v{vA}")
    a(f"v_lshlrev_b32 v{vR}, 4, v5\nv_add_u32 v{vR}, {SFR}, v{vR}")
    a.wait_lg(None)
    order = P4_ORDER
    def read(n, t):
        f = FR + 16 * (n % NS)
        if n == 16: a.ds(f"ds_read_b128 {vr(f+4*t,4)}, v{vR} offset:{t*256}", f"f{n}")
        else: a.ds(f"ds_read_b128 {vr(f+4*t,4)}, v{vA} offset:{order[n]*4096+(t>>1)*1024+(t&1)*256}", f"f{n}")
    a(f"s_mul_i32 s{sT0}, s{sR}, {88*2048}\ns_lshl_b32 s{sT1}, s{sB1}, 11\ns_add_u32 s{sT0}, s{sT0}, s{sT1}\ns_add_u32 s{sT0}, s{sT0}, {HIMG}\ns_add_u32 s{sT1}, s{sT0}, 8192")
    if g.opts.get("s4"): g.stamp(26)
    a.wait_vm("a0")
    if g.opts.get("s4"): g.stamp(27)
    a("s_barrier")
    g.stamp(15)
    Lidle, Ljoin = a.newlabel("p4idle"), a.newlabel("p4join")
    if role == "M":
        a(f"s_cmp_eq_u32 s{sW}, 3\ns_cbranch_scc1 {Lidle}")
        st = a.save()
    if g.opts.get("p4prio", "M") == role: a("s_setprio 1")
    for n in range(2):
        for t in range(4): read(n, t)
    b2 = [] if role == "H" else list(range(nb2, 37))
    for n in range(17):
        if n + 2 == 8:
            a.wait_vm("a1")
            a("s_barrier")
        a.wait_lg(f"f{n}")
        f = FR + 16 * (n % NS)
        for t in range(4):
            for ct in range(nt):
                d = ACC + 16 * ct + 4 * t
                w_ = B1 + 64 * ct + 4 * order[n] if n < 16 else UX + 4 * ct
                a(f"v_mfma_f32_16x16x32_bf16 {vr(d,4)}, {vr(w_,4)}, {vr(f+4*t,4)}, {'0' if n == 0 else vr(d,4)}")
            if n + 2 < 17: read(n + 2, t)
        for _ in range(2):
            if b2 and b2[0] - 21 <= n: ld_b2(g, b2.pop(0))
    g.stamp(16)
    for t32 in range(2):
        for ct in range(nt):
            d = ACC + 16 * ct + 8 * t32
            p = (80 if role == 'H' else 48) + 8 * ct + 4 * t32
            for i in range(4): a(f"v_cvt_pk_bf16_f32 v{p+i}, v{d+2*i}, v{d+2*i+1}")
            for i in (0, 2, 1, 3): a(f"v_pk_max_i16 v{p+i}, v{p+i}, 0")
            a(f"v_permlane16_swap_b32 v{p}, v{p+2}\nv_permlane16_swap_b32 v{p+1}, v{p+3}")
            a.vmem(f"buffer_store_dwordx4 {vr(p,4)}, v{vL16}, {sr(S_WS,4)}, s{sT1 if ct else sT0} offen offset:{t32*1024} sc1", "hs")
    a("s_setprio 0")
    if role == "M":
        for f in b2 + list(range(37, 44)): ld_b2(g, f)
        a(f"s_branch {Ljoin}")
        a.label(Lidle)
        a.restore(st)
        a("s_setprio 2")
        for i in range(8): a.ds(f"ds_read_b64 {vr(ST+2*i,2)}, v{vM} offset:{i*512}")
        a(f"v_add_u32 v{vS}, {SFR}, v{vL16}\nv_lshlrev_b32 v{vM}, 2, v{vL}\nv_add_u32 v{vM}, {RSL}, v{vM}")
        a.wait_lg(None)
        for d, s in ((0, 1), (2, 3), (4, 5), (6, 7), (0, 2), (4, 6), (0, 4)):
            a(f"v_add_f32 v{ST+2*d}, v{ST+2*d}, v{ST+2*s}\nv_add_f32 v{ST+2*d+1}, v{ST+2*d+1}, v{ST+2*s+1}")
        a(f"v_mul_f32 v{ST}, {hex(f2u(-1/512))}, v{ST}\nv_mul_f32 v{ST+1}, {hex(f2u(1/512))}, v{ST+1}")
        a(f"v_fma_f32 v{ST+1}, -v{ST}, v{ST}, v{ST+1}\nv_max_f32 v{ST+1}, 0, v{ST+1}\nv_add_f32 v{ST+1}, {hex(f2u(1e-5))}, v{ST+1}")
        a(f"v_rsq_f32 v{ST+2}, v{ST+1}\nv_mul_f32 v{ST+1}, v{ST+1}, v{ST+2}")
        a.ds(f"ds_write_b32 v{vM}, v{ST+2}")
        a(f"v_cvt_pk_bf16_f32 v{ST+3}, v{ST}, v{ST+1}")
        g.unpack(ST + 4, ST + 3, 1)
        a(f"v_sub_f32 v{ST}, v{ST}, v{ST+4}\nv_sub_f32 v{ST+1}, v{ST+1}, v{ST+5}")
        a(f"v_cvt_pk_bf16_f32 v{ST+8}, v{ST+4}, v{ST+4}\nv_cvt_pk_bf16_f32 v{ST+9}, v{ST}, v{ST+5}\nv_cvt_pk_bf16_f32 v{ST+10}, v{ST+5}, v{ST+1}\nv_mov_b32 v{ST+11}, 0")
        a.ds(f"ds_write_b128 v{vS}, {vr(ST+8,4)}")
        a.wait_lg(None)
        a("s_setprio 0")
        a.wait_vm("a1")
        a("s_barrier")
        for f in range(nb2, 44): ld_b2(g, f)
        a.label(Ljoin)
    p5_setup(g, role)
    if role == "M":
        a.vm = [("old", False)] + [(f"b2_{f}", False) for f in range(37, 44)]
        a.wait_vm("old")
    else: a.wait_vm(None)
    a("s_barrier")
    if role == 'M': post_flag(g, role, FLAG4, LFLAG4, 0)
    g.stamp(17)

def p5_setup(g, role):
    a = g.a
    if role == "H":
        a(f"s_lshl_b32 s{sT0}, s{sW}, 11\ns_add_u32 s{sT0}, s{sT0}, {X2L - 8192}\nv_add_u32 v3, s{sT0}, v{vL16}")
        a.ds(f"ds_write_b128 v3, {vr(X2,4)}")
        a.ds(f"ds_write_b128 v3, {vr(X2+4,4)} offset:1024")
        a(f"s_lshl_b32 s{sT2}, s{sW}, 11\ns_mul_i32 s{sT3}, s{sR}, {88*2048}\ns_mul_i32 s{sT1}, s{sW}, {11*2048}\ns_add_u32 s{sT3}, s{sT3}, s{sT1}\ns_add_u32 s{sT3}, s{sT3}, {HIMG}")
        a.wait_lg(None)

def p5(g, role):
    a = g.a
    UP = int(g.opts.get("p5up", 4)); NSL = 8
    if role == "H":
        wait_flags(g, FLAG4, LFLAG4, "h")
        g.stamp(18)
        def dma(m):
            for dw in (-4, 0):
                a(f"s_add_u32 m0, s{sT2}, {(m % NSL) * 16384 + dw * 2048}\ns_add_u32 s{sT4}, s{sT3}, {m * 2048 + dw * 11 * 2048}")
                for t in range(2):
                    a.vmem(f"buffer_load_dwordx4 v{vL16}, {sr(S_WS,4)}, s{sT4} offen offset:{t*1024} sc1 lds", f"a{m}")
        for m in range(UP):
            a(f"s_setprio {max(3 - m, 0)}")
            dma(m)
        for m in range(11):
            a.wait_vm(f"a{m}")
            a("s_barrier")
            if g.opts.get("s5"): g.stamp(21 + m)
            if m + UP < 11: dma(m + UP)
        a("s_barrier")
        g.stamp(20)
        return
    FA = 48; NF = 4
    vA = (3, 4, 5, 7)
    a(f"s_bfe_u32 s{sT1}, s{sW}, 0x10001\ns_mul_i32 s{sT2}, s{sT1}, 3072")
    a(f"v_add_u32 v3, s{sT2}, v{vL16}\nv_xor_b32 v4, 1024, v3\nv_add_u32 v5, 65536, v3\nv_add_u32 v7, 65536, v4")
    a(f"s_lshl_b32 s{sT1}, s{sT1}, 7\ns_add_u32 s{sT1}, s{sT1}, {RSL}")
    a(f"s_lshl_b32 s{sT2}, s{sW}, 11\ns_add_u32 s{sT2}, s{sT2}, {X2L}")
    a(f"s_lshl_b32 s{sT3}, s{sW}, 12\ns_xor_b32 s{sT5}, s{sT3}, 8192\ns_add_u32 s{sT3}, s{sT3}, {RB5}\ns_add_u32 s{sT5}, s{sT5}, {RB5}")
    g.stamp(18)
    def rd(f):
        m, e = f >> 2, f & 3
        r = FA + 8 * (f % NF)
        off = (m % NSL) * 16384 + e * 4096
        k = off >> 16; off &= 65535
        a.ds(f"ds_read_b128 {vr(r,4)}, v{vA[2*k]} offset:{off}", f"f{f}")
        a.ds(f"ds_read_b128 {vr(r+4,4)}, v{vA[2*k+1]} offset:{off}", f"f{f}")
    GR, GB, XH, RS, vT = 192, 200, 216, 224, 225
    extra = []
    def later(fn): extra.append(fn)
    def ins(text):
        for ln in text.split("\n"): later(lambda ln=ln: a(ln))
    ins(f"v_lshrrev_b32 v{vT}, 5, v{vL}\nv_lshlrev_b32 v{vT}, 4, v{vT}\ns_add_u32 s{sT0}, s{sCO}, {MV2 + 128}\nv_add_u32 v{vT}, s{sT0}, v{vT}")
    ins(f"v_and_b32 v{vT+1}, 31, v{vL}\nv_lshlrev_b32 v{vT+1}, 2, v{vT+1}\nv_add_u32 v{vT+1}, s{sT1}, v{vT+1}\nv_add_u32 v{vT+2}, s{sT2}, v{vL16}")
    later(lambda: a.ds(f"ds_read_b128 {vr(GR,4)}, v{vT}", "e"))
    later(lambda: a.ds(f"ds_read_b128 {vr(GR+4,4)}, v{vT} offset:32", "e"))
    later(lambda: a.ds(f"ds_read_b32 v{RS}, v{vT+1}", "e"))
    later(lambda: a.ds(f"ds_read_b128 {vr(XH,4)}, v{vT+2}", "e"))
    later(lambda: a.ds(f"ds_read_b128 {vr(XH+4,4)}, v{vT+2} offset:1024", "e"))
    ins(f"v_add_u32 v{vT+3}, s{sT5}, v{vL16}\nv_add_u32 v{vT+4}, s{sT3}, v{vL16}")
    for _ in range(9): later(lambda: None)
    later(lambda: a.wait_lg("e"))
    for i in range(8): ins(f"v_and_b32 v{GB+2*i+1}, 0xffff0000, v{GR+i}\nv_lshlrev_b32 v{GB+2*i}, 16, v{GR+i}")
    for i in range(16): ins(f"v_mul_f32 v{GB+i}, v{GB+i}, v{RS}")
    def mf(f, t):
        r = FA + 8 * (f % NF)
        if t == 0: a.wait_lg(f"f{f}")
        if t == 0 and f == 37: a.wait_vm(None)
        c = "0" if f == 0 else vr(ACC + 16 * t, 16)
        a(f"v_mfma_f32_32x32x16_bf16 {vr(ACC+16*t,16)}, {vr(B2REG[f],4)}, {vr(r+4*t,4)}, {c}")
        if t == 1 and f >= 16:
            for _ in range(3):
                if extra: extra.pop(0)()
    LAG = int(g.opts.get("p5lag", 2))
    done = 0
    for m in range(11):
        a("s_barrier")
        for f in range(4 * m, 4 * m + 4):
            if f - LAG >= 0:
                mf(done, 0); rd(f); mf(done, 1); done += 1
            else: rd(f)
    while done < 44:
        if done == 43: mf(done, 1) if False else None
        mf(done, 0); mf(done, 1); done += 1
    assert not extra
    g.stamp(19)
    for i in range(4): a.ds(f"ds_write_b128 v{vT+3}, {vr(ACC+16+4*i,4)} offset:{i*1024}")
    a.wait_lg(None)
    a("s_barrier")
    for i in range(4): a.ds(f"ds_read_b128 {vr(FA+4*i,4)}, v{vT+4} offset:{i*1024}", f"r{i>>1}")
    for h, X in enumerate((X2, XH)):
        a.wait_lg(f"r{h}")
        for i in range(4): a(f"v_pk_add_f32 {vr(ACC+8*h+2*i,2)}, {vr(ACC+8*h+2*i,2)}, {vr(FA+8*h+2*i,2)}")
        for i in range(4): a(f"v_pk_fma_f32 {vr(X+2*i,2)}, {vr(ACC+8*h+2*i,2)}, {vr(GB+8*h+2*i,2)}, {vr(X+2*i,2)}")
        for i in range(4): a(f"v_cvt_pk_bf16_f32 v{X+i}, v{X+2*i}, v{X+2*i+1}")
        a.vmem(f"buffer_store_dwordx4 {vr(X,4)}, v{vXoff}, {sr(S_OUT,4)}, s{sXO} offen offset:{32*h}{' sc1' if g.opts.get('outsc1') else ''}")
    g.stamp(20)
```

```python
import sys, math
from dsl import *

KNAME = "adaLN_cond__softmax_full_mha__dense_activation_relu__prompt_kernel"

EPOCH  = 0
FLAG2  = 0x8000
FLAG4  = 0x10000
FLAG1  = 0x20000
STAT   = 0x40000
WOI    = 0x80000
KV     = 0x100000
OIMG   = 0x500000
XIMG   = 0x700000
HIMG   = 0x900000
W1I    = 0xE80000
W2I    = 0xFE0000
MODP   = 0x1140000
LREC   = 0x1158000
LFLAG1 = 0x11A8000
FLAG1B = 0x18000
WSEND  = 0x11C8000
LOG    = 0x1200000
WSSIZE = 0x1400000

WRING = 65536
SLOT  = 24576
QX    = WRING + 1024
CB    = 24576
RLST  = 0
RLCNT = WRING
GL    = 57344
VRING = 98304
RB3   = 65536
RB5   = 65536
X2L   = 131072
MODL  = 57344
XPL   = 16384
MV    = 147456
ST1   = MV + 2048
ST2   = ST1 + 4096
MV2   = ST2 + 4096
SFR   = MV2 + 256
RSL   = SFR + 1024
LDSSZ = 163840

S_WS, S_X, S_WQ, S_WM, S_C, S_RL, S_OUT = 4, 8, 12, 16, 20, 24, 28
S_PWO, S_PW1, S_PW2 = 32, 36, 38
sW, sXCD, sI, sR, sJ, sTAG = 40, 41, 42, 43, 44, 45
sT0, sT1, sT2, sT3, sT4, sT5, sCNT = 46, 47, 48, 49, 50, 51, 52
sVM = 54
sKVB, sKVO = 56, 57
sB1, sB1b = 58, 59
sU0, sU1, sU2, sU3 = 60, 61, 62, 63
sTB = 3
sROT = 53
sLN = 64
sST = 96
sPM = 98
RLS = [sLN + 8 + k for k in range(9)]
RLV, RLD, RLT = 8, 96, 112
import os
POLL_LIMIT = int(os.environ.get('POLL_LIMIT', 400000))

LOG2E = 1.4426950408889634
def f2u(x):
    import struct
    return struct.unpack("<I", struct.pack("<f", x))[0]

class Gen:
    def __init__(self, stamps=False, stop_after=None, force_slow=False, opts=None):
        self.opts = opts or {}
        self.early_w = 1
        self.prefetch = int(self.opts.get("prefetch", 1))
        self.nt = " nt" if self.opts.get("nt", "1") == "1" else ""
        self.ntx = " nt" if self.opts.get("ntx", "1") == "1" else ""
        self.a = Asm()
        self.stamps = stamps
        self.stop_after = stop_after
        self.force_slow = force_slow
        self.nstamp = 0

    def stamp(self, idx):
        echo = self.opts.get("echo")
        if echo:
            lo, hi = map(int, echo.split("-"))
            if idx in (lo, hi):
                self.a(f"s_memrealtime {sr(sST,2)}")
                self.a("s_waitcnt lgkmcnt(0)"); self.a.lg = []
                self.a(f"s_mov_b32 s{100 if idx == lo else 101}, s{sST}")
        if not self.stamps: return
        a = self.a
        a(f"s_memtime {sr(sST,2)}\ns_memrealtime s[100:101]")
        a("s_waitcnt lgkmcnt(0)"); a.lg = []
        a(f"v_writelane_b32 v{self.vstamp}, s{sST}, {idx}\nv_writelane_b32 v{self.vstamp}, s100, {idx+32}")

    def flush_stamps(self):
        if not self.stamps: return
        a = self.a
        a(f"s_lshl_b32 s{sT0}, s2, 3\ns_add_u32 s{sT0}, s{sT0}, s{sW}\ns_lshl_b32 s{sT0}, s{sT0}, 8\ns_add_u32 s{sT0}, s{sT0}, {LOG}")
        a(f"v_lshlrev_b32 v4, 2, v0")
        a.vmem(f"buffer_store_dword v{self.vstamp}, v4, {sr(S_WS,4)}, s{sT0} offen")

    def poll(self, loads, cmps, name):
        a = self.a
        L = a.newlabel("poll_" + name); Ld = a.newlabel("pdone_" + name)
        a(f"s_mov_b32 s{sCNT}, {POLL_LIMIT}")
        a.label(L)
        for ld in loads: a(ld)
        a(f"s_sub_u32 s{sCNT}, s{sCNT}, 1\ns_cmp_eq_u32 s{sCNT}, 0")
        a("s_waitcnt vmcnt(0)"); a.vm = []
        a(f"s_cbranch_scc1 {Ld}")
        for n, v in enumerate(cmps):
            if n == 0: a(f"v_cmp_ne_u32 vcc, s{sTAG}, v{v}")
            else:
                a(f"v_cmp_ne_u32 {sr(sPM,2)}, v{v}, s{sTAG}")
                a(f"s_or_b64 vcc, vcc, {sr(sPM,2)}")
        a("s_nop 0")
        a(f"s_cbranch_vccnz {L}")
        a.label(Ld)

    def unpack(self, dst, src, n):
        a = self.a
        for i in range(n):
            a(f"v_and_b32 v{dst+2*i+1}, 0xffff0000, v{src+i}")
            a(f"v_lshlrev_b32 v{dst+2*i}, 16, v{src+i}")

    def swap23(self, dst, src, tmp):
        a = self.a
        a(f"v_and_b32 v{tmp}, 4, v{src}\nv_lshlrev_b32 v{tmp}, 1, v{tmp}")
        a(f"v_and_b32 v{dst}, 0xfffffff3, v{src}") if dst != src else None
        assert dst != src
        a(f"v_or_b32 v{dst}, v{dst}, v{tmp}")
        a(f"v_and_b32 v{tmp}, 8, v{src}\nv_lshrrev_b32 v{tmp}, 1, v{tmp}\nv_or_b32 v{dst}, v{dst}, v{tmp}")

    def gemv_issue(self, base, s_lc, s_dst, first=False, cond=False):
        a = self.a
        vC, vOff = base, base + 1
        a(f"s_lshl_b32 s{s_dst}, s{s_lc}, 8\ns_mul_i32 s{sT4}, s{sXCD}, 12288\ns_add_u32 s{s_dst}, s{s_dst}, s{sT4}\ns_add_u32 s{s_dst}, s{s_dst}, {MODP}")
        a(f"s_lshl_b32 s{s_lc}, s{s_lc}, 7\ns_mul_i32 s{sT4}, s{sXCD}, {64*6144}\ns_add_u32 s{s_lc}, s{s_lc}, s{sT4}\ns_lshl_b32 s{sT4}, s{sXCD}, 7")
        self.dma_lane_off(vOff, 0, base + 2, base + 3, 6144)
        a(f"v_lshlrev_b32 v{base+2}, 1, v0\ns_mov_b32 m0, 0")
        if first: self.kernarg_wait()
        a.vmem(f"buffer_load_ushort v{vC}, v{base+2}, {sr(S_C,4)}, s{sT4} offen", "gc", cond)
        for o in range(8 if first else 1): self.gemv_octet(base, s_lc, o, cond)
    def gemv_octet(self, base, s_lc, o, cond=False):
        a = self.a
        if o: a(f"s_mov_b32 m0, {o*1024}\ns_add_u32 s{s_lc}, s{s_lc}, {8*6144}")
        a.vmem(f"buffer_load_dwordx4 v{base+1}, {sr(S_WM,4)}, s{s_lc} offen{self.nt} lds", "gw", cond)
    def gemv_finish(self, base, s_dst, cond=False):
        a = self.a
        vC, vT, vA, vB = base, base + 1, base + 3, base + 2
        S, W = base + 4, base + 12
        D = base + 44
        a(f"v_lshrrev_b32 v{vT}, 4, v0\nv_lshlrev_b32 v{vA}, 10, v{vT}\nv_lshlrev_b32 v{D}, 4, v{vT}")
        a(f"v_bfe_u32 v{vT}, v0, 2, 2\nv_lshl_add_u32 v{vA}, v{vT}, 6, v{vA}\nv_lshl_add_u32 v{D+1}, v{vT}, 6, v{D}")
        a(f"v_and_b32 v{vT}, 3, v0\nv_lshl_add_u32 v{vA}, v{vT}, 3, v{vA}")
        a.wait_vm("gc")
        a(f"v_lshlrev_b32 v{vC}, 16, v{vC}\nv_mul_f32 v{vT}, {hex(f2u(-LOG2E))}, v{vC}\nv_exp_f32 v{vT}, v{vT}\nv_add_f32 v{vT}, 1.0, v{vT}")
        a(f"v_rcp_f32 v{vT}, v{vT}\nv_mul_f32 v{vC}, v{vC}, v{vT}\nv_cvt_pk_bf16_f32 v{vC}, v{vC}, v{vC}")
        a.ds(f"ds_write_b16 v{vB}, v{vC} offset:8192")
        a.ds(f"ds_read_b128 {vr(S,4)}, v{D} offset:8192")
        a.ds(f"ds_read_b128 {vr(S+4,4)}, v{D} offset:8256")
        a(f"v_mov_b32 v{vB}, v{D+1}\nv_mov_b32 v{vT}, 0xff")
        a.wait_vm("gw")
        for ct in range(4):
            for ks in range(2):
                for kq in range(2):
                    a.ds(f"ds_read_b64_tr_b16 {vr(W+8*ct+4*ks+2*kq,2)}, v{vA} offset:{ks*4096+kq*512+(ct>>1)*256+(ct&1)*32}", f"gt{ct}")
        acc = [D, S + 0, W + 0, W + 8]
        acc = [D, W + 0, W + 8, W + 16]
        for ct in range(4):
            a.wait_lg(f"gt{ct}")
            a(f"v_mfma_f32_16x16x32_bf16 {vr(acc[ct],4)}, {vr(W+8*ct,4)}, {vr(S,4)}, 0")
            a(f"v_mfma_f32_16x16x32_bf16 {vr(acc[ct],4)}, {vr(W+8*ct+4,4)}, {vr(S+4,4)}, {vr(acc[ct],4)}")
        for ct in range(1, 4):
            for r in range(4):
                a(f"v_mov_b32_dpp v{D+r}, v{acc[ct]+r} quad_perm:[0,1,2,3] row_mask:0xf bank_mask:{hex(1 << ct)}")
        a(f"v_bfi_b32 v{D+1}, v{vT}, s{sTAG}, v{D+1}\nv_bfi_b32 v{D+3}, v{vT}, s{sTAG}, v{D+3}")
        a(f"s_mov_b32 exec_lo, 0x11111111\ns_mov_b32 exec_hi, 0x11111111")
        a.vmem(f"buffer_store_dwordx4 {vr(D,4)}, v{vB}, {sr(S_WS,4)}, s{s_dst} offen sc1", "mst", cond)
        a("s_mov_b64 exec, -1")

    def gather_issue(self, base, vOff, s_base, cond=False):
        a = self.a
        a(f"s_mov_b32 s{sT4}, s{s_base}")
        for p in range(8):
            a.vmem(f"buffer_load_dwordx4 {vr(base+4*p,4)}, v{vOff}, {sr(S_WS,4)}, s{sT4} offen sc1", f"p{p}", cond)
            if p < 7: a(f"s_add_u32 s{sT4}, s{sT4}, 12288")
    def gather_dma(self, vOff, s_base, s_lds, p, cond=False):
        a = self.a
        a(f"s_add_u32 m0, s{s_lds}, {p*1024}\ns_add_u32 s{sT4}, s{s_base}, {p*12288}")
        a.vmem(f"buffer_load_dwordx4 v{vOff}, {sr(S_WS,4)}, s{sT4} offen sc1 lds", "gd", cond)
    def gather_read(self, base, s_lds, tmp):
        a = self.a
        a.wait_vm("gd")
        a(f"v_add_u32 v{tmp}, s{s_lds}, v2")
        for p in range(8): a.ds(f"ds_read_b128 {vr(base+4*p,4)}, v{tmp} offset:{p*1024}")
        a.wait_lg(None)
    def gather_finish(self, base, vOff, s_base, s_add, name, pk=True):
        a = self.a
        L = a.newlabel("g_" + name); Ld = a.newlabel("gd_" + name)
        a(f"s_mov_b32 s{sCNT}, {POLL_LIMIT}")
        a.label(L)
        chk = base + 32
        for p in range(8):
            a.wait_vm(f"p{p}")
            r = base + 4 * p
            a(f"v_xor_b32 v{r+1}, s{sTB}, v{r+1}\nv_xor_b32 v{r+3}, s{sTB}, v{r+3}")
            if p == 0: a(f"v_or_b32 v{chk}, v{r+1}, v{r+3}")
            else:
                a(f"v_or3_b32 v{chk}, v{chk}, v{r+1}, v{r+3}")
                if pk: a(f"v_pk_add_f32 {vr(base,2)}, {vr(base,2)}, {vr(r,2)}\nv_pk_add_f32 {vr(base+2,2)}, {vr(base+2,2)}, {vr(r+2,2)}")
                else:
                    for i in range(4): a(f"v_add_f32 v{base+i}, v{base+i}, v{r+i}")
        a(f"v_and_b32 v{chk}, 0xff, v{chk}\nv_cmp_ne_u32 vcc, 0, v{chk}")
        a(f"s_sub_u32 s{sCNT}, s{sCNT}, 1\ns_cmp_eq_u32 s{sCNT}, 0\ns_cbranch_scc1 {Ld}")
        a(f"s_cbranch_vccz {Ld}")
        st = a.save()
        self.gather_issue(base, vOff, s_base)
        a("s_waitcnt vmcnt(0)")
        a(f"s_branch {L}")
        a.restore(st)
        a.label(Ld)
        a(f"v_cvt_pk_bf16_f32 v{base+4}, v{base}, v{base+1}\nv_cvt_pk_bf16_f32 v{base+5}, v{base+2}, v{base+3}")
        if s_add is not None:
            self.unpack(base, base + 4, 2)
            for i in range(4): a(f"v_add_f32 v{base+i}, s{s_add}, v{base+i}")
            a(f"v_cvt_pk_bf16_f32 v{base+4}, v{base}, v{base+1}\nv_cvt_pk_bf16_f32 v{base+5}, v{base+2}, v{base+3}")

    def wdma_ops(self, n):
        a = self.a
        def op(o, kind):
            if kind == 0:
                if o == 0: a(f"s_add_u32 s{sT0}, s{sROT}, {n}\ns_and_b32 s{sT0}, s{sT0}, 7\ns_mul_i32 s{sT0}, s{sT0}, {64*3072}\ns_add_u32 s{sT0}, s{sT0}, s{sU0}")
                a(f"s_add_u32 m0, s{sU1}, {WRING + (n & 3) * SLOT + o * 3072}")
                if o == 1: a(f"s_add_u32 s{sT0}, s{sT0}, {8*3072}")
            a.vmem(f"buffer_load_dwordx4 v{(3, 7)[o]}, {sr(S_WQ,4)}, s{sT0} offen offset:{kind*1024} lds", f"w{n}")
        return [lambda o=o, kind=kind: op(o, kind) for o in range(2) for kind in range(3)]
    def wdma(self, n):
        for op in self.wdma_ops(n): op()

    def dma_lane_off(self, dst, vL, t0, t1, pitch):
        a = self.a
        a(f"v_lshrrev_b32 v{t0}, 5, v{vL}\nv_bfe_u32 v{t1}, v{vL}, 2, 2\nv_lshl_add_u32 v{t0}, v{t0}, 2, v{t1}")
        a(f"v_mul_u32_u24 v{dst}, {pitch}, v{t0}")
        a(f"v_bfe_u32 v{t0}, v{vL}, 4, 1\nv_lshl_add_u32 v{dst}, v{t0}, 6, v{dst}")
        a(f"v_and_b32 v{t0}, 3, v{vL}\nv_lshl_add_u32 v{dst}, v{t0}, 4, v{dst}")

    def prologue(self):
        a = self.a
        if self.opts.get("echo", "").startswith("99-"): a("s_memrealtime s[100:101]")
        a(f"s_cmp_ge_u32 s2, 256\ns_cbranch_scc1 L_exit")
        a(f"""s_load_dwordx2 {sr(S_WM,2)}, s[0:1], 56
s_load_dwordx2 {sr(S_C,2)}, s[0:1], 48
s_load_dwordx2 {sr(S_WS,2)}, s[0:1], 80
s_load_dwordx2 {sr(S_X,2)}, s[0:1], 0
s_load_dwordx2 {sr(S_WQ,2)}, s[0:1], 8
s_load_dwordx2 {sr(S_OUT,2)}, s[0:1], 64
s_load_dwordx2 {sr(S_PWO,2)}, s[0:1], 16
s_load_dwordx4 {sr(S_PW1,4)}, s[0:1], 32""")
        a(f"v_lshrrev_b32 v1, 6, v0\nv_and_b32 v0, 63, v0\nv_readfirstlane_b32 s{sW}, v1\nv_lshlrev_b32 v2, 4, v0")
        for s, n in ((S_WS, WSSIZE if self.stamps else WSEND), (S_X, 2097152), (S_WQ, 1572864), (S_WM, 3145728), (S_C, 1024), (S_OUT, 2097152)):
            a(f"s_mov_b32 s{s+2}, {n}\ns_mov_b32 s{s+3}, 0x20000")
        a(f"""s_and_b32 s{sXCD}, s2, 7
s_lshr_b32 s{sI}, s2, 3
s_lshr_b32 s{sT0}, s{sI}, 3
s_lshl_b32 s{sR}, s{sXCD}, 2
s_add_u32 s{sR}, s{sR}, s{sT0}
s_add_u32 s{sJ}, s{sI}, {int(self.opts.get('joff', 0))}
s_and_b32 s{sJ}, s{sJ}, 7
s_add_u32 s{sROT}, s{sJ}, s{sXCD}
s_mul_i32 s{sT0}, s{sT0}, {int(self.opts.get('rrot', 2))}
s_cmp_eq_u32 s{sJ}, 3
s_cselect_b32 s{sT0}, s{sT0}, 0
s_add_u32 s{sROT}, s{sROT}, s{sT0}
s_mov_b32 s{sVM}, 0xffff
s_mov_b32 s{sVM+1}, 0xffff
s_mul_i32 s{sU0}, s{sW}, {16*3072}
s_lshl_b32 s{sT1}, s{sJ}, 7
s_add_u32 s{sU0}, s{sU0}, s{sT1}
s_mul_i32 s{sU1}, s{sW}, 6144""")
        self.dma_lane_off(3, 0, 4, 5, 3072)
        a("v_xor_b32 v7, 32, v3")
        a(f"s_cmp_ge_u32 s{sW}, 4\ns_cbranch_scc1 L_H")

    def kernarg_wait(self):
        self.a("s_waitcnt lgkmcnt(0)")
        self.a(f"s_load_dword s{sTAG}, {sr(S_WS,2)}, {EPOCH}")

    def get_tag(self):
        self.a("s_waitcnt lgkmcnt(0)"); self.a.lg = []
        self.a(f"s_add_u32 s{sTAG}, s{sTAG}, 0x9e3779b9\ns_and_b32 s{sTB}, s{sTAG}, 0xff")

    def p1_M(self):
        a = self.a
        vL, vL16 = 0, 2
        G = 24
        Lno = a.newlabel("nomod1")
        a(f"s_lshl_b32 s{sT0}, s{sW}, 5\ns_add_u32 s{sU2}, s{sT0}, s{sI}\ns_cmp_ge_u32 s{sU2}, 16\ns_cbranch_scc1 {Lno}")
        st = a.save()
        a("s_setprio 3")
        self.gemv_issue(G, sU2, sU3, first=True)
        a(f"v_lshlrev_b32 v5, 2, v0")
        a.vmem(f"buffer_load_dword v8, v5, {sr(S_WS,4)}, s{sU3} offen sc1")
        self.get_tag()
        self.gemv_finish(G, sU3)
        a("s_setprio 0")
        Lj = a.newlabel("join1")
        a(f"s_branch {Lj}")
        a.label(Lno)
        a.restore(st)
        a(f"s_mul_i32 s{sT0}, s2, 6144\ns_lshl_b32 s{sT1}, s{sW}, 11\ns_add_u32 s{sT0}, s{sT0}, s{sT1}\ns_max_u32 s{sT0}, s{sT0}, 2048\ns_sub_u32 s{sT0}, s{sT0}, 2048\nv_lshlrev_b32 v5, 5, v0")
        self.kernarg_wait()
        a.vmem(f"buffer_load_dword v8, v5, {sr(S_WQ,4)}, s{sT0} offen")
        self.code_prefetch(G)
        self.get_tag()
        a.wait_vm(None)
        a.label(Lj)
        a.vm = []
        self.stamp(1)
        seq = self.opts.get("p0seq", "01x2b3").replace("x", ",").replace("b", ",").split(",")
        for n in seq[0]: self.wdma(int(n))
        vA, vW0, vW1, vVst, vQ = 16, 18, 19, 20, 21
        t0, t1, t2 = 4, 5, 6
        a(f"v_and_b32 v{t0}, 15, v{vL}\nv_lshrrev_b32 v{t1}, 4, v{vL}\nv_lshrrev_b32 v{t2}, 1, v{t0}\nv_xor_b32 v{t2}, v{t2}, v{t1}\nv_lshlrev_b32 v{t2}, 4, v{t2}")
        a(f"v_lshl_add_u32 v{vA}, v{t0}, 7, v{t2}\nv_xor_b32 v{vA+1}, 64, v{vA}")
        a(f"v_mul_u32_u24 v{vW0}, 3072, v{t1}\nv_bfe_u32 v{t2}, v{vL}, 2, 2\nv_lshl_add_u32 v{vW0}, v{t2}, 6, v{vW0}")
        a(f"v_xor_b32 v{t2}, s{sW}, v{t1}\nv_and_b32 v{t2}, 1, v{t2}\nv_lshl_add_u32 v{vW0}, v{t2}, 5, v{vW0}\nv_and_b32 v{t2}, 3, v{vL}\nv_lshl_add_u32 v{vW0}, v{t2}, 3, v{vW0}")
        a(f"s_lshr_b32 s{sT3}, s{sW}, 1\ns_lshl_b32 s{sT3}, s{sT3}, 8\ns_add_u32 s{sT3}, s{sT3}, {WRING}\nv_add_u32 v{vW0}, s{sT3}, v{vW0}\nv_add_u32 v{vW1}, {2*SLOT}, v{vW0}")
        self.swap23(vVst, t0, t2)
        a(f"v_lshlrev_b32 v{vVst}, 4, v{vVst}\nv_and_b32 v{t2}, 1, v{t1}\nv_lshl_add_u32 v{vVst}, v{t2}, 9, v{vVst}\nv_lshrrev_b32 v{t2}, 1, v{t1}\nv_lshl_add_u32 v{vVst}, v{t2}, 8, v{vVst}")
        a(f"s_lshl_b32 s{sT3}, s{sW}, 11\ns_add_u32 s{sT3}, s{sT3}, {QX}\nv_add_u32 v{vQ}, s{sT3}, v{vL16}")
        a(f"s_lshl_b32 s{sU2}, s{sJ}, 2\ns_add_u32 s{sU2}, s{sU2}, s{sW}\ns_lshl_b32 s{sU2}, s{sU2}, 17\ns_lshl_b32 s{sT3}, s{sR}, 12\ns_add_u32 s{sU2}, s{sU2}, s{sT3}\ns_add_u32 s{sU2}, s{sU2}, {KV}")
        ACC = 24
        FA = (72, 88, 104)
        PARK = 128
        def wreg(step): return PARK + 12 * (step & 7)
        def rdW(step, lo=0, hi=6, tag=None):
            n, ks = step >> 1, step & 1
            vb = vW0 if (n & 3) < 2 else vW1
            for i in range(lo, hi):
                kind, kq = divmod(i, 2)
                off = (n & 1) * SLOT + ks * 12288 + kind * 1024 + kq * 512
                a.ds(f"ds_read_b64_tr_b16 {vr(wreg(step)+4*kind+2*kq,2)}, v{vb} offset:{off}", tag or f"f{step}")
        def rdA(step, t):
            n, ks = step >> 1, step & 1
            a.ds(f"ds_read_b128 {vr(FA[step%3]+4*t,4)}, v{vA+ks} offset:{n*8192+t*2048}", f"f{step}")
        def mf(step, t, kind):
            d = ACC + 16 * kind + 4 * t
            c = "0" if step == 0 else vr(d, 4)
            w_, h_ = vr(wreg(step) + 4 * kind, 4), vr(FA[step % 3] + 4 * t, 4)
            A, B = (w_, h_) if kind < 2 else (h_, w_)
            a(f"v_mfma_f32_16x16x32_bf16 {vr(d,4)}, {A}, {B}, {c}")
        a(f"s_lshl_b32 s{sT1}, s{sW}, 10\ns_add_u32 s{sT2}, s{sT1}, {MODP}\ns_cmp_ge_u32 s{sW}, 2\ns_cselect_b32 s{sT3}, 1.0, 0")
        a(f"v_add_u32 v4, s{sT1}, v{vL16}")
        self.stamp(7)
        a("s_barrier")
        self.stamp(6)
        self.gather_issue(G, vL16, sT2)
        for n in seq[1]: self.wdma(int(n))
        self.gather_finish(G, vL16, sT2, sT3, "m1")
        self.unpack(G, G + 4, 2)
        a.ds(f"ds_write_b128 v4, {vr(G,4)} offset:{MODL}")
        a.wait_vm(["w0", "w1"])
        a.wait_lg(None)
        a("s_barrier")
        self.stamp(5)
        for n in seq[2]: self.wdma(int(n))
        a(f"s_lshl_b32 s{sT0}, s{sJ}, 2\ns_add_u32 s{sT0}, s{sT0}, s{sW}\ns_lshl_b32 s{sT0}, s{sT0}, 5\ns_add_u32 s{sT0}, s{sT0}, s{sR}\ns_lshl_b32 s{sT0}, s{sT0}, 7\ns_add_u32 s{sT0}, s{sT0}, {LFLAG1}")
        a("s_mov_b64 exec, 1")
        a.vmem(f"buffer_load_dword v22, off, {sr(S_WS,4)}, s{sT0} sc1")
        a("s_mov_b64 exec, -1")
        for step in range(4): rdW(step, tag="pk")
        a.wait_vm(["w2", "w3"])
        a.wait_lg(None)
        a("s_barrier")
        self.stamp(2)
        for st_ in range(2):
            for t in range(4): rdA(st_, t)
        late = {0: self.wdma_ops(4) + self.wdma_ops(5), 2: self.wdma_ops(6) + self.wdma_ops(7)}
        pend = []
        for step in range(16):
            nxt = step + 2
            pend += late.get(step, [])
            slots = [[] for _ in range(12)]
            if nxt < 16:
                ops = [lambda t=t: rdA(nxt, t) for t in range(4)]
                if nxt >= 8: ops = [lambda i=i: rdW(nxt, i, i + 1) for i in range(6)] + ops
                for k, op in enumerate(ops): slots[k].append(op)
                if step < 2:
                    for i in range(12): slots[i].append(lambda i=i: rdW(4 + 2 * step + i // 6, i % 6, i % 6 + 1, tag="pk"))
            for k in ((2, 5, 8, 11) if step < 6 else ()):
                if pend: slots[k].append(pend.pop(0))
            a.wait_lg(f"f{step}" if step != 2 else "pk")
            k = 0
            for t in range(4):
                for kind in range(3):
                    mf(step, t, kind)
                    if k == 0 and step in (2, 6, 10):
                        if step > 2: a.wait_vm(["w4", "w5"] if step == 6 else ["w6", "w7"])
                        a("s_barrier")
                    for op in slots[k]: op()
                    k += 1
            if self.opts.get("lstamp") and step in (1, 3, 5, 7, 9, 11, 13): self.stamp(24 + step // 2)
        assert not pend
        self.stamp(3)
        PK = 72
        def pack(kind, t32, p):
            d = ACC + 16 * kind + 8 * t32
            for i in (0, 2, 1, 3): a(f"v_cvt_pk_bf16_f32 v{p+i}, v{d+2*i}, v{d+2*i+1}")
            a(f"v_permlane16_swap_b32 v{p}, v{p+2}\nv_permlane16_swap_b32 v{p+1}, v{p+3}")
        for t32 in range(2):
            pack(1, t32, PK + 8 * t32)
            a.vmem(f"buffer_store_dwordx4 {vr(PK+8*t32,4)}, v{vL16}, {sr(S_WS,4)}, s{sU2} offen offset:{t32*2048} sc1", "kv")
            pack(2, t32, PK + 8 * t32 + 4)
            a.vmem(f"buffer_store_dwordx4 {vr(PK+8*t32+4,4)}, v{vVst}, {sr(S_WS,4)}, s{sU2} offen offset:{t32*2048+1024} sc1", "kv")
        a(f"s_mov_b32 s{sT0}, {hex(f2u(0.25*LOG2E))}")
        for i in range(16): a(f"v_mul_f32 v{ACC+i}, s{sT0}, v{ACC+i}")
        for t32 in range(2):
            pack(0, t32, 8 + 4 * t32)
            a.ds(f"ds_write_b128 v{vQ}, {vr(8+4*t32,4)} offset:{t32*1024}")
        a.wait_lg(None)
        a("s_barrier")
        a(f"s_lshl_b32 s{sT0}, s{sJ}, 2\ns_add_u32 s{sT0}, s{sT0}, s{sW}\ns_lshl_b32 s{sT0}, s{sT0}, 5\ns_add_u32 s{sT0}, s{sT0}, s{sR}\ns_lshl_b32 s{sT0}, s{sT0}, 7")
        a(f"s_add_u32 s{sT1}, s{sT0}, {LFLAG1}\ns_add_u32 s{sT0}, s{sT0}, {FLAG1}")
        a(f"v_mov_b32 v4, s{sTAG}\nv_lshlrev_b32 v5, 2, v0")
        a.wait_vm(None)
        a("s_mov_b32 exec_hi, 0")
        a.vmem(f"buffer_store_dword v4, v5, {sr(S_WS,4)}, s{sT1} offen")
        a.vmem(f"buffer_store_dword v4, v5, {sr(S_WS,4)}, s{sT0} offen sc1")
        a("s_mov_b64 exec, -1")
        self.stamp(4)

    def code_prefetch(self, tmp):
        if not self.prefetch: return
        a = self.a
        Ls = a.newlabel("nopf"); Lh = a.newlabel("here")
        a(f"s_cmp_lg_u32 s{sW}, 0\ns_cbranch_scc1 {Ls}")
        a(f"s_getpc_b64 {sr(S_RL,2)}")
        a.label(Lh)
        a(f"s_sub_u32 s{S_RL}, s{S_RL}, {Lh}-{KNAME}\ns_subb_u32 s{S_RL+1}, s{S_RL+1}, 0")
        a(f"s_mov_b32 s{S_RL+2}, L_code_end-{KNAME}\ns_mov_b32 s{S_RL+3}, 0x20000")
        a(f"s_sub_u32 s{sT0}, s{sI}, 16\ns_lshl_b32 s{sT0}, s{sT0}, 12\nv_lshlrev_b32 v{tmp}, 6, v0")
        a.vmem(f"buffer_load_dword v{tmp+1}, v{tmp}, {sr(S_RL,4)}, s{sT0} offen", None, cond=True)
        a.label(Ls)

    def p1_H(self):
        a = self.a
        vL, vL16 = 0, 2
        F = 128
        X = 64
        vX, vH0, vH1, vMa, vSw, vSr = 48, 50, 51, 52, 54, 55
        NR = 16
        MD = (64, 80)
        STL = 49152
        a(f"s_sub_u32 s{sT5}, s{sW}, 4\ns_lshl_b32 s{sT1}, s{sR}, 16\ns_add_u32 s{sT2}, s{sROT}, s{sT5}\ns_and_b32 s{sT2}, s{sT2}, 7\ns_lshl_b32 s{sT2}, s{sT2}, 7")
        a(f"v_lshrrev_b32 v4, 3, v{vL}\nv_and_b32 v5, 7, v{vL}\nv_lshlrev_b32 v{vX}, 10, v4\nv_lshl_add_u32 v{vX}, v5, 4, v{vX}")
        a(f"v_add_u32 v{vX}, s{sT2}, v{vX}\nv_xor_b32 v{vX+1}, 512, v{vX}")
        self.kernarg_wait()
        sO = sLN + 17
        if self.opts.get("xprio", "1") == "1": a("s_setprio 3")
        a(f"s_mul_i32 s{sO}, s{sT5}, {int(self.opts.get('orot', 2))}")
        sXB = sLN + 18
        a(f"s_mov_b32 s{sXB}, s{sT1}")
        def ldx(hf, o):
            a(f"s_add_u32 s{sT0}, s{sO}, {o}\ns_and_b32 s{sT0}, s{sT0}, 7\ns_lshl_b32 s{sT0}, s{sT0}, 13\ns_add_u32 s{sT0}, s{sT0}, s{sXB}")
            a.vmem(f"buffer_load_dwordx4 {vr(X+8*o+4*hf,4)}, v{vX+hf}, {sr(S_X,4)}, s{sT0} offen{self.ntx}", f"x{hf}{o}")
        NX0 = int(self.opts.get("nx0", 8))
        xl = [(hf, o) for hf in range(2) for o in range(8)]
        for _ in range(NX0): ldx(*xl.pop(0))
        a(f"v_lshrrev_b32 v6, 4, v{vL}\nv_xor_b32 v6, v6, v5\nv_lshlrev_b32 v6, 4, v6\nv_lshl_add_u32 v6, v4, 7, v6\ns_lshl_b32 s{sT3}, s{sT5}, 13")
        a(f"v_add_u32 v{vH0}, s{sT3}, v6\nv_xor_b32 v{vH1}, 64, v{vH0}")
        a(f"s_lshl_b32 s{sT2}, s{sT2}, 1\nv_lshlrev_b32 v{vMa}, 5, v5\nv_add_u32 v{vMa}, s{sT2}, v{vMa}\nv_xor_b32 v{vMa+1}, 1024, v{vMa}")
        a(f"s_lshl_b32 s{sT3}, s{sT5}, 3\nv_lshlrev_b32 v{vSw}, 5, v4\nv_and_b32 v6, 4, v5\nv_add3_u32 v{vSw}, v{vSw}, v6, s{sT3}\ns_lshl_b32 s{sT3}, s{sT5}, 9\nv_lshl_add_u32 v{vSr}, v4, 3, s{sT3}")
        self.rl_setup()
        if self.opts.get("s0"): self.stamp(22)
        SS, QQ = 16, 32
        for hf in range(2):
            for o in range(8):
                a.wait_vm(f"x{hf}{o}")
                if self.opts.get("s0") and o in (0, 4): self.stamp(23 + 2 * hf + o // 4)
                for _ in range(2):
                    if xl:
                        ldx(*xl.pop(0))
                        if not xl: a("s_setprio 0")
                f = F + 64 * hf + 8 * o; S_, Q_ = SS + 2 * o, QQ + 2 * o
                self.unpack(f, X + 8 * o + 4 * hf, 4)
                for i in range(4):
                    if hf == 0 and i == 0:
                        a(f"v_pk_add_f32 {vr(S_,2)}, {vr(f,2)}, {vr(f+2,2)}\nv_pk_mul_f32 {vr(Q_,2)}, {vr(f,2)}, {vr(f,2)}")
                    else:
                        if not (hf == 0 and i == 1): a(f"v_pk_add_f32 {vr(S_,2)}, {vr(S_,2)}, {vr(f+2*i,2)}")
                        a(f"v_pk_fma_f32 {vr(Q_,2)}, {vr(f+2*i,2)}, {vr(f+2*i,2)}, {vr(Q_,2)}")
        self.stamp(1)
        self.get_tag()
        Z = 56
        for o in range(8): a(f"v_add_f32 v{SS+2*o}, v{SS+2*o}, v{SS+2*o+1}\nv_add_f32 v{QQ+2*o}, v{QQ+2*o}, v{QQ+2*o+1}")
        for o in range(8): a(f"v_add_f32_dpp v{Z+o}, v{SS+2*o}, v{SS+2*o} row_half_mirror row_mask:0xf bank_mask:0x5")
        for o in range(8): a(f"v_add_f32_dpp v{Z+o}, v{QQ+2*o}, v{QQ+2*o} row_half_mirror row_mask:0xf bank_mask:0xa")
        for mode in ("quad_perm:[1,0,3,2]", "quad_perm:[2,3,0,1]"):
            for o in range(8): a(f"v_add_f32_dpp v{Z+o}, v{Z+o}, v{Z+o} {mode} row_mask:0xf bank_mask:0xf")
        vH = 40
        for o in range(0, 8, 2):
            a(f"s_add_u32 s{sT0}, s{sO}, {o}\ns_and_b32 s{sT0}, s{sT0}, 7\ns_lshl_b32 s{sT1}, s{sT0}, 8\ns_lshl_b32 s{sT0}, s{sT0}, 10\nv_add_u32 v6, s{sT1}, v{vSw}")
            a.ds(f"ds_write_b32 v6, v{Z+o} offset:{STL}")
            a.ds(f"ds_write_b32 v6, v{Z+o+1} offset:{STL+256}")
            a(f"v_add_u32 v{vH+o}, s{sT0}, v{vH0}\nv_add_u32 v{vH+o+1}, s{sT0}, v{vH1}")
        a(f"v_lshlrev_b32 v6, 5, v{vL}")
        a.wait_lg(None)
        a("s_barrier")
        a.ds(f"ds_read_b128 {vr(32,4)}, v6 offset:{STL}")
        a.ds(f"ds_read_b128 {vr(36,4)}, v6 offset:{STL+16}")
        a.wait_lg(None)
        a(f"v_pk_add_f32 v[32:33], v[32:33], v[34:35]\nv_pk_add_f32 v[36:37], v[36:37], v[38:39]\nv_pk_add_f32 v[32:33], v[32:33], v[36:37]")
        a(f"v_mul_f32 v32, {hex(f2u(-1/512))}, v32\nv_mul_f32 v33, {hex(f2u(1/512))}, v33")
        a(f"v_fma_f32 v33, -v32, v32, v33\nv_max_f32 v33, 0, v33\nv_add_f32 v33, {hex(f2u(1e-5))}, v33")
        a(f"v_rsq_f32 v34, v33\nv_mul_f32 v35, v32, v34")
        a(f"s_lshl_b32 s{sT0}, s{sO}, 3\nv_subrev_u32 v6, s{sT0}, v{vL}\nv_and_b32 v6, 63, v6\ns_lshl_b32 s{sT0}, s{sT5}, 9\nv_lshl_add_u32 v6, v6, 3, s{sT0}")
        a.ds(f"ds_write_b64 v6, v[34:35] offset:{STL+2048}")
        for o in range(8): a.ds(f"ds_read_b64 {vr(NR+2*o,2)}, v{vSr} offset:{STL+2048+o*64}", f"n{o}")
        for o in range(8):
            a.wait_lg(f"n{o}")
            for hf in range(2):
                f = F + 64 * hf + 8 * o
                for i in range(4):
                    a(f"v_pk_fma_f32 {vr(f+2*i,2)}, {vr(f+2*i,2)}, {vr(NR+2*o,2)}, {vr(NR+2*o,2)} op_sel:[0,0,1] op_sel_hi:[1,0,1]")
        def hrow(hf, o):
            d = MD[hf]; f = F + 64 * hf + 8 * o
            if hf == 0:
                for i in range(4): a(f"v_pk_fma_f32 {vr(f+2*i,2)}, {vr(f+2*i,2)}, {vr(d+8+2*i,2)}, {vr(d+2*i,2)}")
            elif "hvalu" not in self.opts.get("abl", ""):
                for i in range(8): a(f"v_fma_f32 v{f+i}, v{f+i}, v{d+8+i}, v{d+i}")
            if hf == 0 or "hvalu" not in self.opts.get("abl", ""):
                for i in range(4): a(f"v_cvt_pk_bf16_f32 v{f+i}, v{f+2*i}, v{f+2*i+1}")
            if hf == 0 or "hwr" not in self.opts.get("abl", ""): a.ds(f"ds_write_b128 v{vH+o}, {vr(f,4)} offset:{hf*32768+(o&1)*1024}")
        rlat = int(self.opts.get("rlat", -2))
        self.stamp(2)
        a("s_barrier")
        self.stamp(3)
        for hf in range(2):
            for k, off in enumerate((0, 16, 2048, 2064)): a.ds(f"ds_read_b128 {vr(MD[hf]+4*k,4)}, v{vMa+hf} offset:{MODL+off}", f"md{hf}")
        if rlat == -2: self.rl_issue()
        a.wait_lg("md0")
        for o in range(8): hrow(0, o)
        a.wait_lg(None)
        a("s_barrier")
        self.stamp(4)
        if rlat == -1: self.rl_issue()
        if self.opts.get("hprio", "0") == "1": a("s_setprio 1")
        for o in range(8):
            hrow(1, o)
            if o == 1: a("s_barrier")
            if o == rlat: self.rl_issue()
        a.wait_lg(None)
        a("s_barrier")
        self.rl_stage()
        self.rl_read()
        a("s_barrier")
        a(f"v_mov_b32 v4, {RLCNT}\nv_mov_b32 v5, 0")
        a.ds("ds_write_b32 v4, v5")
        self.rl_store()
        a.wait_lg(None)
        a("s_barrier")
        self.stamp(5)

    def rl_setup(self):
        a = self.a
        vL, vL16 = 0, 2
        sU, sP, sDst, sSA, sSB, sDA, sDB, sSrc, sNF = RLS
        Lb, Lj = a.newlabel("rl_w1"), a.newlabel("rl_j")
        vRo, vRa = RLV, RLV + 1
        t0, t1, t2 = 4, 5, 6
        a(f"s_lshl_b32 s{sU}, s{sT5}, 5\ns_add_u32 s{sU}, s{sU}, s{sR}\ns_mov_b32 s{S_RL+3}, 0x20000")
        a(f"s_cmp_ge_u32 s{sU}, 60\ns_cbranch_scc1 {Lb}")
        a(f"""s_cmp_ge_u32 s{sU}, 16
s_cselect_b32 s{S_RL}, s{S_PW2}, s{S_PWO}
s_cselect_b32 s{S_RL+1}, s{S_PW2+1}, s{S_PWO+1}
s_cselect_b32 s{S_RL+2}, {1376*1024}, 0
s_cselect_b32 s{sT0}, 16, 0
s_cselect_b32 s{sDB}, 88, 32
s_cselect_b32 s{sDst}, {W2I - WOI}, 0
s_max_u32 s{S_RL+2}, s{S_RL+2}, {512*1024}
s_add_u32 s{sDst}, s{sDst}, {WOI}
s_lshl_b32 s{sDB}, s{sDB}, 10
s_sub_u32 s{sT0}, s{sU}, s{sT0}
s_mov_b32 s{sP}, 8192
s_lshl_b32 s{sSrc}, s{sT0}, 15
s_lshl_b32 s{sT2}, s{sJ}, 7
s_add_u32 s{sSrc}, s{sSrc}, s{sT2}
s_mul_i32 s{sT2}, s{sJ}, s{sDB}
s_lshl_b32 s{sT2}, s{sT2}, 1
s_add_u32 s{sDst}, s{sDst}, s{sT2}
s_lshl_b32 s{sT2}, s{sT0}, 11
s_add_u32 s{sDst}, s{sDst}, s{sT2}
s_mov_b32 s{sDA}, 1024
s_mov_b32 s{sSA}, 2048
s_mov_b32 s{sSB}, 256
s_mov_b32 s{sNF}, 4""")
        self.dma_lane_off(vRo, vL, t0, t1, 1024)
        a(f"v_lshrrev_b32 v{t0}, 5, v{vL}\nv_lshlrev_b32 v{vRa}, 10, v{t0}")
        a(f"v_bfe_u32 v{t0}, v{vL}, 4, 1\nv_lshl_add_u32 v{vRa}, v{t0}, 5, v{vRa}")
        a(f"v_and_b32 v{t0}, 1, v{vL}\nv_lshl_add_u32 v{vRa}, v{t0}, 4, v{vRa}")
        a(f"v_bfe_u32 v{t0}, v{vL}, 1, 1\nv_lshl_add_u32 v{vRa}, v{t0}, 3, v{vRa}")
        a(f"s_branch {Lj}")
        a.label(Lb)
        a(f"""s_mov_b32 s{S_RL}, s{S_PW1}
s_mov_b32 s{S_RL+1}, s{S_PW1+1}
s_cmp_lt_u32 s{sU}, 108
s_cselect_b32 s{S_RL+2}, {512*2752}, 0
s_sub_u32 s{sT0}, s{sU}, 60
s_and_b32 s{sT1}, s{sT0}, 15
s_lshr_b32 s{sT0}, s{sT0}, 4
s_mov_b32 s{sP}, {8*2752}
s_mul_i32 s{sT3}, s{sJ}, 11
s_lshl_b32 s{sT2}, s{sT0}, 2
s_add_u32 s{sT3}, s{sT3}, s{sT2}
s_mul_i32 s{sSrc}, s{sT1}, {32*2752}
s_lshl_b32 s{sT2}, s{sT3}, 5
s_add_u32 s{sSrc}, s{sSrc}, s{sT2}
s_lshl_b32 s{sDst}, s{sT3}, 14
s_lshl_b32 s{sT1}, s{sT1}, 10
s_add_u32 s{sDst}, s{sDst}, s{sT1}
s_add_u32 s{sDst}, s{sDst}, {W1I}
s_mov_b32 s{sDA}, 32768
s_mov_b32 s{sDB}, 16384
s_mov_b32 s{sSA}, 256
s_mov_b32 s{sSB}, 32
s_cmp_eq_u32 s{sT0}, 2
s_cselect_b32 s{sNF}, 3, 4
s_sub_u32 s{sT2}, 2752, s{sT2}""")
        self.dma_lane_off(vRo, vL, t0, t1, 2752)
        a(f"v_bfe_u32 v{t0}, v{vL}, 4, 1\nv_lshlrev_b32 v{t0}, 6, v{t0}\nv_and_b32 v{t1}, 3, v{vL}\nv_lshl_add_u32 v{t0}, v{t1}, 4, v{t0}")
        a(f"v_cmp_le_i32 vcc, s{sT2}, v{t0}\nv_mov_b32 v{t0}, 0x400000\nv_cndmask_b32 v{vRo}, v{vRo}, v{t0}, vcc")
        a(f"v_lshrrev_b32 v{t0}, 4, v{vL}\nv_lshlrev_b32 v{vRa}, 10, v{t0}")
        a(f"v_lshl_add_u32 v{vRa}, v{t1}, 3, v{vRa}")
        a.label(Lj)
        a(f"v_bfe_u32 v{t0}, v{vL}, 2, 2\nv_lshl_add_u32 v{vRa}, v{t0}, 6, v{vRa}")
        a(f"s_lshl_b32 s{sT0}, s{sT5}, 12\ns_add_u32 s{sU2}, s{sT0}, {RLST}\nv_add_u32 v{vRa}, s{sU2}, v{vRa}")
        a(f"v_add_u32 v{vRa+1}, s{sSB}, v{vRa}\nv_add_u32 v{vRa+2}, s{sSA}, v{vRa}\nv_add_u32 v{vRa+3}, s{sSA}, v{vRa+1}")

    def rl_issue(self):
        a = self.a
        sU, sP, sDst, sSA, sSB, sDA, sDB, sSrc, sNF = RLS
        for o in range(4):
            a.vmem(f"buffer_load_dwordx4 {vr(RLD+4*o,4)}, v{RLV}, {sr(S_RL,4)}, s{sSrc} offen{self.nt}", "rl")
            if o < 3: a(f"s_add_u32 s{sSrc}, s{sSrc}, s{sP}")
    def rl_stage(self):
        a = self.a
        a.wait_vm("rl")
        a(f"v_add_u32 v{RLV}, s{sU2}, v2")
        for o in range(4): a.ds(f"ds_write_b128 v{RLV}, {vr(RLD+4*o,4)} offset:{o*1024}")
    def rl_read(self):
        a = self.a
        for f in range(4):
            for kq in range(2):
                a.ds(f"ds_read_b64_tr_b16 {vr(RLT+4*f+2*kq,2)}, v{RLV+1+f} offset:{kq*512}", "rt")
    def rl_store(self):
        a = self.a
        sU, sP, sDst, sSA, sSB, sDA, sDB, sSrc, sNF = RLS
        Ls = a.newlabel("norl2")
        a.wait_lg("rt")
        a(f"s_cmp_ge_u32 s{sU}, 108\ns_cbranch_scc1 {Ls}")
        a(f"s_add_u32 s{sSA}, s{sDst}, s{sDB}\ns_add_u32 s{sSB}, s{sDst}, s{sDA}\ns_add_u32 s{sP}, s{sSA}, s{sDA}")
        for f, sd in enumerate((sDst, sSA, sSB, sP)):
            if f == 3: a(f"s_cmp_eq_u32 s{sNF}, 3\ns_cbranch_scc1 {Ls}")
            a.vmem(f"buffer_store_dwordx4 {vr(RLT+4*f,4)}, v2, {sr(S_WS,4)}, s{sd} offen sc1", "rs", cond=True)
        a.label(Ls)

    def end(self):
        a = self.a
        if self.opts.get("echo") or self.opts.get("delay"):
            L = a.newlabel("echo")
            if self.opts.get("echo"):
                a(f"s_sub_u32 s100, s101, s100\ns_mul_i32 s100, s100, {int(self.opts.get('mult', 1))}\ns_min_u32 s100, s100, 100000")
                a(f"s_memrealtime {sr(sST,2)}\ns_waitcnt lgkmcnt(0)\ns_mov_b32 s101, s{sST}")
                a.label(L)
                a(f"s_memrealtime {sr(sST,2)}\ns_waitcnt lgkmcnt(0)\ns_sub_u32 s{sST}, s{sST}, s101\ns_cmp_lt_u32 s{sST}, s100\ns_cbranch_scc1 {L}")
            else:
                a(f"s_memtime {sr(sST,2)}\ns_waitcnt lgkmcnt(0)\ns_mov_b32 s101, s{sST}")
                a.label(L)
                a(f"s_memtime {sr(sST,2)}\ns_waitcnt lgkmcnt(0)\ns_sub_u32 s{sST}, s{sST}, s101\ns_cmp_lt_u32 s{sST}, {int(self.opts['delay'])}\ns_cbranch_scc1 {L}")
        self.flush_stamps()
        self.a("s_endpgm")

    def role(self, r):
        a = self.a
        a.vm = []; a.lg = []
        self.vstamp = 1
        if self.stamps: a(f"v_mov_b32 v{self.vstamp}, 0")
        self.stamp(0)
        (self.p1_M if r == "M" else self.p1_H)()
        if self.stop_after == 1: return self.end()
        from phases import p2, p3, p4, p5
        p2(self, r)
        if self.stop_after == 2: return self.end()
        p3(self, r)
        if self.stop_after == 3: return self.end()
        p4(self, r)
        if self.stop_after == 4: return self.end()
        p5(self, r)
        self.end()

    def build(self):
        a = self.a
        self.prologue()
        self.role("M")
        a.label("L_H")
        self.role("H")
        a.label("L_exit")
        a("s_endpgm")
        a.label("L_code_end")
        rep = []
        body, added = fix_hazards(a.L, rep)
        self.hazard_report = rep
        hdr = open("adaLN_cond__softmax_full_mha__dense_activation_relu__prompt.s.ref").read().split("; Override launch")[0]
        pre = int(self.opts.get("empty", 0)); post = int(self.opts.get("emptypost", 0))
        if pre or post:
            src = hdr + "; @launch kernel=empty_kernel grid=(256,1,1) block=(64,1,1) lds=0\n" * pre + f"; @launch kernel={KNAME} grid=(256,1,1) block=(512,1,1) lds={LDSSZ}\n" + "; @launch kernel=empty_kernel grid=(256,1,1) block=(64,1,1) lds=0\n" * post
            body = body + [".globl empty_kernel", ".p2align 8", ".type empty_kernel,@function", "empty_kernel:", "    s_endpgm"]
        else:
            src = hdr + f"; @launch grid=(256,1,1) block=(512,1,1) lds={LDSSZ}\n"
        src += f'.amdgcn_target "amdgcn-amd-amdhsa--gfx950"\n.text\n.globl {KNAME}\n.p2align 8\n.type {KNAME},@function\n{KNAME}:\n'
        src += "\n".join(body) + "\n"
        src += f""".section .rodata,"a"
.p2align 6
.amdhsa_kernel {KNAME}
  .amdhsa_next_free_vgpr 256
  .amdhsa_next_free_sgpr 102
  .amdhsa_accum_offset 256
  .amdhsa_group_segment_fixed_size 0
  .amdhsa_kernarg_size 88
  .amdhsa_user_sgpr_count 2
  .amdhsa_user_sgpr_kernarg_segment_ptr 1
  .amdhsa_system_sgpr_workgroup_id_x 1
.end_amdhsa_kernel
"""
        if pre or post:
            src += """.p2align 6
.amdhsa_kernel empty_kernel
  .amdhsa_next_free_vgpr 8
  .amdhsa_next_free_sgpr 16
  .amdhsa_accum_offset 8
  .amdhsa_group_segment_fixed_size 0
  .amdhsa_kernarg_size 88
  .amdhsa_user_sgpr_count 2
  .amdhsa_user_sgpr_kernarg_segment_ptr 1
  .amdhsa_system_sgpr_workgroup_id_x 1
.end_amdhsa_kernel
"""
        return src

if __name__ == "__main__":
    import argparse
    ap = argparse.ArgumentParser()
    ap.add_argument("-o", default="out.s")
    ap.add_argument("--stamps", action="store_true")
    ap.add_argument("--stop", type=int, default=None)
    ap.add_argument("--slow", action="store_true")
    ap.add_argument("--rep", action="store_true")
    ap.add_argument("--opt", action="append", default=[])
    args = ap.parse_args()
    g = Gen(stamps=args.stamps, stop_after=args.stop, force_slow=args.slow, opts=dict(o.split("=") for o in args.opt))
    s = g.build()
    open(args.o, "w").write(s)
    if args.rep:
        for r in g.hazard_report: print(r)
    print("wrote", args.o, len(s), "bytes;", len(g.hazard_report), "nops inserted", file=sys.stderr)
```
